```python
import torch

def _softmax(x, axis=-1):
    return torch.softmax(x, dim=axis)
def _gelu(x):
    return torch.nn.functional.gelu(x, approximate="tanh")
def _silu(x):
    return torch.nn.functional.silu(x)
def _sigmoid(x):
    return torch.sigmoid(x)
def _layernorm(x, axis=-1, eps=1e-5):
    m = x.mean(dim=axis, keepdim=True)
    v = x.var(dim=axis, keepdim=True, unbiased=False)
    return (x - m) / torch.sqrt(v + eps)
def _scatter_add(tgt, idx, src, axis=0):
    return tgt.clone().index_add_(axis, idx, src)
def _segment_sum(src, seg, n):
    out = torch.zeros((n,) + src.shape[1:], dtype=src.dtype)
    return out.index_add_(0, seg, src)
def _pad(x, pw):
    flat = tuple(v for pair in reversed(pw) for v in pair)
    return torch.nn.functional.pad(x, flat)

kernel_name = 'recurrent_scan__compressed_kv_cla__mixer_s_mlp__prompt'

def setup_inputs():

    _w = (lambda a: (lambda t: t.to(torch.bfloat16) if t.is_floating_point() else t)(torch.as_tensor(a)))
    def _A_setup():
        B, H, Sq, Sk, D, M = 1, 32, 2048, 2048, 128, 640
        Dc = 4 * D
        return {
            "x": _w((lambda *s: torch.randn(*s, dtype=torch.bfloat16) * 0.05)(B, Sq, M)),
            "c_kv": _w((lambda *s: torch.randn(*s, dtype=torch.bfloat16) * 0.2)(B, Sk, Dc)),
            "w_q": _w((lambda *s: torch.randn(*s, dtype=torch.bfloat16) * 3.2)(M, H, D) * (M ** -0.5)),
            "w_uk": _w((lambda *s: torch.randn(*s, dtype=torch.bfloat16) * 3.2)(Dc, H, D) * (Dc ** -0.5)),
            "w_uv": _w((lambda *s: torch.randn(*s, dtype=torch.bfloat16) * 0.2)(Dc, H, D) * (Dc ** -0.5)),
            "w_o": _w((lambda *s: torch.randn(*s, dtype=torch.bfloat16) * 0.2)(H, D, M) * ((H * D) ** -0.5)),
        }
    _A_in = _A_setup()

    def _B_setup():
        B, S, D, F = 1, 2048, 640, 1728
        return {
            "x":  _w((lambda *s: torch.randn(*s, dtype=torch.bfloat16) * 0.05)(B, S, D)),
            "w1": _w((lambda *s: torch.randn(*s, dtype=torch.bfloat16) * 3.2)(D, D) * (D ** -0.5)),
            "w2": _w((lambda *s: torch.randn(*s, dtype=torch.bfloat16) * 3.2)(D, D) * (D ** -0.5)),
            "w3": _w((lambda *s: torch.randn(*s, dtype=torch.bfloat16) * 3.2)(D, F) * (D ** -0.5)),
            "w4": _w((lambda *s: torch.randn(*s, dtype=torch.bfloat16) * 1.6)(F, D) * (F ** -0.5)),
        }
    _B_in = _B_setup()

    return {
        "A_x": _A_in["x"],
        "A_c_kv": _A_in["c_kv"],
        "A_w_q": _A_in["w_q"],
        "A_w_uk": _A_in["w_uk"],
        "A_w_uv": _A_in["w_uv"],
        "A_w_o": _A_in["w_o"],
        "B_x": _B_in["x"],
        "B_w1": _B_in["w1"],
        "B_w2": _B_in["w2"],
        "B_w3": _B_in["w3"],
        "B_w4": _B_in["w4"],
    }

def reference(A_x, A_c_kv, A_w_q, A_w_uk, A_w_uv, A_w_o, B_x, B_w1, B_w2, B_w3, B_w4):
    def _A_ref(x, c_kv, w_q, w_uk, w_uv, w_o):
        B, Sq, M = x.shape[0], x.shape[1], x.shape[2]
        Sk = c_kv.shape[1]
        H, D = w_q.shape[1], w_q.shape[2]
        q = torch.einsum("bqm,mhd->bhqd", x, w_q)
        k = torch.einsum("bkc,chd->bhkd", c_kv, w_uk)
        v = torch.einsum("bkc,chd->bhkd", c_kv, w_uv)
        scores = torch.einsum("bhqd,bhkd->bhqk", q, k) * (D ** -0.5)
        off = Sk - Sq
        qi = torch.arange(Sq)[:, None]
        kj = torch.arange(Sk)[None, :]
        cmask = kj <= (qi + off)
        scores = torch.where(cmask[None, None], scores, -1e9)
        p = _softmax(scores, axis=-1)
        ctx = torch.einsum("bhqk,bhkd->bhqd", p, v)
        return torch.einsum("bhqd,hdm->bqm", ctx, w_o)

    def _B_ref(x, w1, w2, w3, w4):
        B, S, D = x.shape
        h = _gelu(_layernorm(x, axis=-1) @ w1)
        c = D // 4
        g0 = _pad(h[:, :, 0*c:1*c], ((0, 0), (1, 0), (0, 0)))[:, :S, :]
        g1 = _pad(h[:, :, 1*c:2*c], ((0, 0), (0, 1), (0, 0)))[:, 1:, :]
        g2 = _pad(h[:, :, 2*c:3*c], ((0, 0), (2, 0), (0, 0)))[:, :S, :]
        g3 = _pad(h[:, :, 3*c:   ], ((0, 0), (0, 2), (0, 0)))[:, 2:, :]
        hs = torch.concatenate([g0, g1, g2, g3], axis=-1) @ w2
        x1 = x + hs
        h2 = _gelu(_layernorm(x1, axis=-1) @ w3) @ w4
        return x1 + h2

    x = A_x
    xn = _layernorm(x, axis=-1)
    s = _A_ref(xn, A_c_kv, A_w_q, A_w_uk, A_w_uv, A_w_o)
    g = _silu(_B_ref(xn, B_w1, B_w2, B_w3, B_w4))
    return x + s * g
```

```python
from fw import *
import struct

KA = dict(x=0, ckv=8, wq=16, wuk=24, wuv=32, wo=40, w1=56, w2=64, w3=72, w4=80, out=88, dbg=96, ws=104)
SZ = dict(x=2048*640*2, ckv=2048*512*2, wq=640*4096*2, wuk=512*4096*2, wuv=512*4096*2, wo=4096*640*2,
          w1=640*640*2, w2=640*640*2, w3=640*1728*2, w4=1728*640*2, out=2048*640*2, dbg=256, ws=0x10000000)
WS_KV = 0x0
WS_XN = 0x2100000
WS_XN2 = 0x2400000
WS_HS = 0x2700000
WS_X1 = 0x2A00000
WS_H3 = 0x2D00000
WS_CTX = 0x3400000
WS_WOP = 0x4400000
WS_W4P = 0x4900000
WS_CS3 = 0x4C00000
WS_ST1 = 0x4C10000

def f2u(f):
    return struct.unpack("<I", struct.pack("<f", f))[0]
def fx(f):
    return hex(f2u(f))

LOG2E = 1.4426950408889634
GC1 = -2.0 * 0.7978845608028654 * LOG2E
GC2 = GC1 * 0.044715

def load_srds(a, lst):
    for s, n in lst:
        a.e(f"s_load_dwordx2 s[{s}:{s+1}], s[0:1], {KA[n]}")
    for s, n in lst:
        a.e(f"s_mov_b32 s{s+2}, {hex(SZ[n])}")
        a.e(f"s_mov_b32 s{s+3}, 0x00020000")

def gelu_ops(x, t, c2):
    return [f"v_mul_f32 v{t}, v{x}, v{x}",
            f"v_fmaak_f32 v{t}, v{t}, v{c2}, {fx(GC1)}",
            f"v_mul_f32 v{t}, v{t}, v{x}",
            f"v_exp_f32 v{t}, v{t}",
            f"v_add_f32 v{t}, 1.0, v{t}",
            f"v_rcp_f32 v{t}, v{t}",
            f"v_mul_f32 v{x}, v{x}, v{t}"]

def interleave(lists):
    out = []
    n = max(len(l) for l in lists)
    for i in range(n):
        for l in lists:
            if i < len(l): out.append(l[i])
    return out

class Kern:
    def __init__(self, name, grid, block, lds, text, vgpr, agpr_off, sgpr=96):
        self.name, self.grid, self.block, self.lds = name, grid, block, lds
        self.text, self.vgpr, self.agpr_off, self.sgpr = text, vgpr, agpr_off, sgpr

HDR = open("recurrent_scan__compressed_kv_cla__mixer_s_mlp__prompt.s.ref").read().split("; Override launch")[0]

def assemble_file(kerns, launches=None):
    out = HDR
    if launches is None: launches = kerns
    for k in launches:
        out += f"; @launch kernel={k.name} grid=({k.grid},1,1) block=({k.block},1,1) lds={k.lds}\n"
    out += '.amdgcn_target "amdgcn-amd-amdhsa--gfx950"\n.text\n'
    for k in kerns:
        errs = check(k.text)
        if errs:
            print(k.name, "HAZARDS:", len(errs))
            for e_ in errs[:40]: print("  ", e_)
            raise SystemExit(1)
        out += kernel_header(k.name) + k.text
    out += '.section .rodata,"a"\n'
    for k in kerns:
        out += ".p2align 6\n" + kernel_desc(k.name, k.vgpr, k.agpr_off, k.sgpr)
    return out
```

```python
import re

def vr(b, n=1, k='v'):
    return f"{k}{b}" if n == 1 else f"{k}[{b}:{b+n-1}]"
def ar(b, n=1):
    return vr(b, n, 'a')
def sr(b, n=1):
    return vr(b, n, 's')

class R:
    def __init__(self, k, b, n=1):
        self.k, self.b, self.n = k, b, n
    def __str__(self):
        return vr(self.b, self.n, self.k)
    def sub(self, o, n=1):
        assert o + n <= self.n, (o, n, self.n)
        return R(self.k, self.b + o, n)
    def __getitem__(self, i):
        return self.sub(i, 1)

class Asm:
    def __init__(self):
        self.L = []
        self.lg = []
        self.vm = []
        self.uid = 0
        self.auto = False
        self.hist = []
        self.nnop = 0
    def _put(self, ln):
        if self.auto:
            c = parse(ln)
            if c is not None and c.kind != "label":
                d = 0; w = 0
                for p in reversed(self.hist):
                    if d >= 12: break
                    w = max(w, need(p, c) - d)
                    d += p.ws
                if w > 0:
                    self.nnop += w
                    n = f"s_nop {w-1}"
                    self.L.append(n); self.hist.append(parse(n))
                self.hist.append(c)
                if len(self.hist) > 16: self.hist = self.hist[-16:]
        self.L.append(ln)
    def e(self, s):
        for ln in s.split("\n"):
            self._put(ln)
    def label(self, s):
        self.L.append(s + ":")
    def newlabel(self, p="L"):
        self.uid += 1
        return f"{p}_{self.uid}"
    def ds(self, s, tag=None):
        self._put(s); self.lg.append(tag)
    def vmem(self, s, tag=None):
        self._put(s); self.vm.append(tag)
    def wait_lg(self, tags):
        if not isinstance(tags, (list, set)): tags = [tags]
        idx = -1
        for i, t in enumerate(self.lg):
            if t in tags: idx = i
        if idx < 0: return False
        n = len(self.lg) - 1 - idx
        n = min(n, 15)
        self._put(f"s_waitcnt lgkmcnt({n})")
        self.lg = self.lg[len(self.lg) - n:] if n else []
        return True
    def wait_vm(self, tags):
        if not isinstance(tags, (list, set)): tags = [tags]
        idx = -1
        for i, t in enumerate(self.vm):
            if t in tags: idx = i
        if idx < 0: return False
        n = len(self.vm) - 1 - idx
        n = min(n, 63)
        self._put(f"s_waitcnt vmcnt({n})")
        self.vm = self.vm[len(self.vm) - n:] if n else []
        return True
    def wait_lg0(self):
        self._put("s_waitcnt lgkmcnt(0)"); self.lg = []
    def wait_vm0(self):
        self._put("s_waitcnt vmcnt(0)"); self.vm = []
    def nop(self, n):
        while n > 0:
            k = min(n, 16)
            self._put(f"s_nop {k-1}")
            n -= k
    def text(self):
        return "\n".join(self.L) + "\n"

_reg = re.compile(r"^(v|a|s)(\d+)$|^(v|a|s)\[(\d+):(\d+)\]$")
def regs_of(op):
    op = op.strip()
    neg = op.lstrip("-|").rstrip("|")
    m = _reg.match(neg)
    if m:
        if m.group(1): return {(m.group(1), int(m.group(2)))}
        return {(m.group(3), i) for i in range(int(m.group(4)), int(m.group(5)) + 1)}
    if neg in ("vcc", "vcc_lo", "vcc_hi"): return {("vcc", 0)}
    if neg in ("exec", "exec_lo", "exec_hi"): return {("exec", 0)}
    if neg == "m0": return {("m0", 0)}
    return set()

TRANS = ("v_exp_", "v_log_", "v_rcp_", "v_rsq_", "v_sqrt_", "v_sin_", "v_cos_")
class Ins:
    pass
def parse(line):
    s = line.split(";")[0].strip()
    if not s or s.startswith("."): return None
    if s.endswith(":"):
        i = Ins(); i.kind = "label"; i.name = s[:-1]; i.text = s; return i
    parts = s.split(None, 1)
    mn = parts[0]
    rest = parts[1] if len(parts) > 1 else ""
    ops = [o.strip() for o in rest.split(",")] if rest else []
    mods = ""
    if ops:
        last = ops[-1].split(None, 1)
        if len(last) > 1:
            ops[-1] = last[0]; mods = last[1]
    i = Ins(); i.mn = mn; i.text = s; i.ops = ops; i.mods = mods
    i.dst = set(); i.src = set(); i.ws = 1
    R_ = [regs_of(o) for o in ops]
    allr = set().union(*R_) if R_ else set()
    if mn.startswith("v_mfma"):
        i.kind = "mfma"; i.D = R_[0]; i.A = R_[1]; i.B = R_[2]; i.C = R_[3]
        i.dst = R_[0]; i.src = R_[1] | R_[2] | R_[3]
        i.passes = 8 if "32x32x16" in mn else 4
    elif mn.startswith("v_"):
        i.kind = "valu"
        i.trans = mn.startswith(TRANS)
        i.dot = mn.startswith("v_dot")
        if mn.startswith("v_cmpx"):
            i.dst = {("exec", 0)}; i.src = allr
        elif mn.startswith("v_permlane") and "swap" in mn:
            i.dst = R_[0] | R_[1]; i.src = R_[0] | R_[1]
        elif mn == "v_nop":
            pass
        elif "_co_" in mn:
            i.dst = R_[0] | R_[1]; i.src = set().union(*R_[2:])
        else:
            i.dst = R_[0]; i.src = set().union(*R_[1:]) if len(R_) > 1 else set()
            if mn.startswith(("v_fmac", "v_mac", "v_dot2c", "v_writelane", "v_pk_fmac")): i.src |= R_[0]
        i.dpp = ("row_" in mods or "quad_perm" in mods or "wave_" in mods or "_dpp" in mn)
    elif mn.startswith("ds_"):
        i.kind = "ds"
        if mn.startswith(("ds_read", "ds_bpermute", "ds_permute", "ds_swizzle")) or "_rtn" in mn:
            i.dst = R_[0]; i.src = set().union(*R_[1:])
        else:
            i.src = allr
    elif mn.startswith(("buffer_", "global_", "flat_")):
        i.kind = "vmem"
        toks = mods.split()
        i.lds = "lds" in toks
        i.store = "store" in mn or "atomic" in mn
        if i.lds: i.src = allr | {("m0", 0)}
        elif i.store: i.src = allr
        elif mn.startswith("buffer_inv") or mn.startswith("buffer_wbl2"): pass
        else:
            i.dst = R_[0]; i.src = set().union(*R_[1:])
        i.wide = i.store and ("x4" in mn or "x3" in mn)
        if i.wide:
            i.data = R_[0] if mn.startswith("buffer_") else R_[1]
    elif mn.startswith("s_"):
        i.kind = "salu"
        if mn == "s_nop": i.ws = int(ops[0], 0) + 1
        elif mn.startswith(("s_cmp", "s_waitcnt", "s_barrier", "s_branch", "s_cbranch", "s_endpgm", "s_setprio", "s_sleep", "s_bitcmp", "s_setreg")):
            i.src = allr
        else:
            i.dst = R_[0] if R_ else set(); i.src = set().union(*R_[1:]) if len(R_) > 1 else set()
            if "saveexec" in mn: i.dst = i.dst | {("exec", 0)}
    else:
        raise ValueError("unknown instr " + s)
    return i

def need(p, c):
    n = 0
    vg = lambda S: {r for r in S if r[0] in "va"}
    sg = lambda S: {r for r in S if r[0] in ("s", "vcc")}
    if p.kind == "valu":
        if c.kind == "mfma":
            if vg(p.dst) & c.src: n = max(n, 3 if p.dot else 2)
            if ("exec", 0) in p.dst: n = max(n, 4)
        if c.kind == "valu":
            if c.mn.startswith(("v_readfirstlane", "v_readlane")):
                if vg(p.dst) & c.src: n = max(n, 1)
                if ("exec", 0) in p.dst: n = max(n, 4)
            if c.mn.startswith(("v_readlane", "v_writelane")) and sg(p.dst) & c.src: n = max(n, 4)
            if sg(p.dst) & c.src: n = max(n, 2)
            if p.trans and not c.trans and (vg(p.dst) & c.src): n = max(n, 1)
            if c.mn.startswith("v_permlane"):
                if vg(p.dst) & c.src: n = max(n, 2)
                if ("exec", 0) in p.dst: n = max(n, 4)
            if c.dpp:
                if vg(p.dst) & c.src: n = max(n, 2)
                if ("exec", 0) in p.dst: n = max(n, 5)
            if p.dot and (vg(p.dst) & (c.src | c.dst)):
                same = c.mn == p.mn and not (vg(p.dst) & set().union(*[regs_of(o) for o in c.ops[1:3]]))
                if not same: n = max(n, 3)
            if "op_sel" in p.mods or "sdwa" in p.mn or "dst_sel" in p.mods:
                if vg(p.dst) & (c.src | c.dst): n = max(n, 1)
        if c.kind == "vmem":
            if sg(p.dst) & c.src: n = max(n, 5)
        if c.kind in ("vmem", "ds"):
            if p.dot and (vg(p.dst) & c.src): n = max(n, 3)
            if p.trans and (vg(p.dst) & c.src): n = max(n, 1)
    if p.kind == "mfma":
        big = 12 if p.passes == 8 else 8
        mid = 10 if p.passes == 8 else 6
        war = 7 if p.passes == 8 else 3
        if c.kind == "mfma":
            if p.D & (c.A | c.B): n = max(n, big)
            if p.D & c.C:
                if not (p.D == c.C and p.passes == c.passes): n = max(n, mid)
            elif p.D & c.D: n = max(n, mid)
        elif c.kind in ("valu", "vmem", "ds"):
            if p.D & (c.src | c.dst): n = max(n, big)
            if c.kind == "valu" and (p.C & c.dst): n = max(n, war)
    if p.kind == "salu":
        if ("m0", 0) in p.dst and c.kind == "vmem" and getattr(c, "lds", False): n = max(n, 1)
    if p.kind == "vmem" and getattr(p, "wide", False):
        if p.data & c.dst: n = max(n, 2 if c.kind == "valu" else 1)
    return n

def check(text):
    ins = []
    for ln in text.split("\n"):
        i = parse(ln)
        if i is not None: ins.append(i)
    lab = {i.name: k for k, i in enumerate(ins) if i.kind == "label"}
    def succ(k):
        i = ins[k]
        if i.kind == "label": return [k + 1]
        if i.mn == "s_endpgm": return []
        if i.mn == "s_branch": return [lab[i.ops[0]]]
        if i.mn.startswith("s_cbranch"): return [k + 1, lab[i.ops[0]]]
        return [k + 1]
    errs = []
    for k, p in enumerate(ins):
        if p.kind == "label": continue
        if p.kind == "salu" and ("m0", 0) not in p.dst: continue
        if p.kind == "ds": continue
        if p.kind == "vmem" and not getattr(p, "wide", False): continue
        lim = 12 if p.kind == "mfma" else 5
        stack = [(s, 0) for s in succ(k)]
        seen = {}
        while stack:
            j, d = stack.pop()
            if j >= len(ins) or d >= lim: continue
            if seen.get(j, 99) <= d: continue
            seen[j] = d
            c = ins[j]
            if c.kind == "label":
                stack.append((j + 1, d)); continue
            n = need(p, c)
            if n > d: errs.append(f"hazard need {n} have {d}: [{p.text}] -> [{c.text}]")
            for s in succ(j): stack.append((s, d + c.ws))
    return errs

def kernel_header(name):
    return f".globl {name}\n.p2align 8\n.type {name},@function\n{name}:\n"

def kernel_desc(name, vgpr, agpr_off, sgpr=96):
    return (f".amdhsa_kernel {name}\n  .amdhsa_next_free_vgpr {vgpr}\n  .amdhsa_next_free_sgpr {sgpr}\n"
            f"  .amdhsa_accum_offset {agpr_off}\n  .amdhsa_group_segment_fixed_size 0\n  .amdhsa_kernarg_size 112\n"
            f"  .amdhsa_user_sgpr_count 2\n  .amdhsa_user_sgpr_kernarg_segment_ptr 1\n"
            f"  .amdhsa_system_sgpr_workgroup_id_x 1\n.end_amdhsa_kernel\n")
```

```python
from common import *

S_, Q_, NM, P_, O_, FR = 16, 80, 112, 128, 144, 208
NF = 8
VB, VL0, VL1, VMX, VQ, VNEG, VG, VT0, VT1 = 7, 8, 9, 10, 11, 12, 13, 14, 15
THR = 8.0

def attn_kernel(D=7):
    a = Asm()
    a.auto = True
    grid = 256
    load_srds(a, [(4, "wq"), (8, "ws")])
    a.e("v_lshrrev_b32 v1, 6, v0")
    a.e("v_and_b32 v2, 63, v0")
    a.e("v_readfirstlane_b32 s24, v1")
    a.e(f"s_cmp_ge_u32 s2, {grid}")
    a.e("s_cbranch_scc1 Lat_end")
    a.e("s_and_b32 s25, s2, 7")
    a.e("s_lshl_b32 s25, s25, 2")
    a.e("s_bfe_u32 s31, s2, 0x20003")
    a.e("s_add_u32 s25, s25, s31")
    a.e("s_lshr_b32 s26, s2, 5")
    a.e("s_sub_u32 s31, 15, s26")
    a.e("s_sub_u32 s32, 7, s24")
    a.e("s_cmp_lt_u32 s24, 4")
    a.e("s_cselect_b32 s31, s31, s26")
    a.e("s_cselect_b32 s32, s24, s32")
    a.e("s_lshl_b32 s27, s31, 2")
    a.e("s_add_u32 s27, s27, s32")
    a.e("s_lshr_b32 s28, s27, 1")
    a.e("v_bfe_u32 v14, v2, 2, 2")
    a.e("v_and_b32 v15, 3, v2")
    a.e("v_lshlrev_b32 v3, 13, v14")
    a.e("v_lshl_add_u32 v3, v15, 4, v3")
    a.e("v_lshrrev_b32 v1, 4, v2")
    a.e("v_lshl_add_u32 v3, v1, 6, v3")
    a.e(f"v_lshlrev_b32 v{VG}, 4, v2")
    a.e("s_mul_i32 s33, s27, 40960")
    a.e(f"s_add_u32 s33, s33, {WS_XN}")
    a.e("s_lshl_b32 s34, s24, 17")
    a.e("s_lshl_b32 s31, s25, 8")
    a.e("s_add_u32 s34, s34, s31")
    a.e("s_lshl_b32 s35, s24, 12")
    a.e("s_waitcnt lgkmcnt(0)")
    qpos = [1, 2, 3, 0, 4]
    XB = [O_, O_ + 32, NM, Q_, O_]
    def ldx(st, i):
        if i % 4 == 0 and (st or i): a.e("s_add_u32 s33, s33, 4096")
        r = XB[st] + 4 * i
        a.vmem(f"buffer_load_dwordx4 v[{r}:{r+3}], v{VG}, s[8:11], s33 offen offset:{(i%4)*1024}", ("X", st))
    for st in range(5):
        for g in range(4):
            a.e(f"s_add_u32 m0, s35, {qpos[st]*32768 + g*1024}")
            a.e(f"s_add_u32 s31, s34, {(st*128 + 4*g)*8192}")
            a.vmem(f"buffer_load_dwordx4 v3, s[4:7], s31 offen lds", ("W", st))
        if st < 4:
            for i in range(8): ldx(st, i)
    a.e("v_lshrrev_b32 v1, 5, v2")
    a.e("v_lshlrev_b32 v4, 10, v1")
    a.e("v_lshl_add_u32 v4, v14, 6, v4")
    a.e("v_bfe_u32 v14, v2, 4, 1")
    a.e("v_lshl_add_u32 v4, v14, 5, v4")
    a.e("v_lshl_add_u32 v4, v15, 3, v4")
    a.e("v_add_u32 v5, 0x10000, v4")
    a.e("v_add_u32 v6, 0x20000, v4")
    a.e(f"v_mov_b32 v{VB}, v{VG}")
    a.e("s_and_b32 s31, s32, 1")
    a.e("s_lshl_b32 s31, s31, 5")
    a.e(f"v_and_b32 v{VQ}, 31, v2")
    a.e(f"v_add_u32 v{VQ}, s31, v{VQ}")
    a.e(f"v_lshlrev_b32 v15, 2, v1")
    a.e(f"v_sub_u32 v{VQ}, v{VQ}, v15")
    a.e(f"v_mov_b32 v{VNEG}, {fx(-1e30)}")
    a.e("v_and_b32 v15, 15, v2")
    a.e("v_lshlrev_b32 v15, 4, v15")
    a.e("v_lshl_add_u32 v15, v14, 10, v15")
    a.e("v_lshl_add_u32 v1, v1, 8, v15")
    a.e("s_lshl_b32 s29, s25, 20")
    a.e("s_lshr_b32 s36, s27, 1")
    a.e("s_lshl_b32 s36, s36, 7")
    a.e("s_lshl_b32 s31, s25, 2")
    a.e("s_add_u32 s36, s36, s31")
    a.e("s_lshl_b32 s36, s36, 12")
    a.e("s_and_b32 s31, s27, 1")
    a.e("s_lshl_b32 s31, s31, 11")
    a.e("s_add_u32 s36, s36, s31")
    a.e(f"s_add_u32 s36, s36, {WS_CTX}")
    a.e("s_lshl_b32 s37, s24, 13")
    a.e("s_cmp_ge_u32 s24, 4")
    a.e("s_cbranch_scc1 Lat_B")
    save = (list(a.vm), list(a.lg))
    body(a, True, D, qpos, XB, ldx)
    a.label("Lat_B")
    a.vm, a.lg = list(save[0]), list(save[1])
    a.hist = []
    body(a, False, D, qpos, XB, ldx)
    a.label("Lat_end")
    a.e("s_endpgm")
    print("attn auto nops:", a.nnop)
    return Kern("attn_kernel", grid, 512, 163840, a.text(), 240, 240, 64)

def mf(a, d, A, B, c):
    a.e(f"v_mfma_f32_32x32x16_bf16 v[{d}:{d+15}], v[{A}:{A+3}], v[{B}:{B+3}], {c}")
def rng16(d): return f"v[{d}:{d+15}]"

def body(a, isA, D, qpos, XB, ldx):
    T = "A" if isA else "B"
    seq = [(st, ks, db) for st in range(5) for ks in range(8) for db in range(4)]
    DQ = 6
    def rdq(n):
        st, ks, db = seq[n]
        if ks == 0 and db == 0:
            a.wait_vm(("W", st))
            a.e("s_barrier")
        f = FR + 4 * (n % NF)
        p = qpos[st]
        base = [4, 4, 5, 5, 6][p]
        off = (p % 2) * 32768 + ks * 4096 + db * 256
        a.ds(f"ds_read_b64_tr_b16 v[{f}:{f+1}], v{base} offset:{off}", ("F", n))
        a.ds(f"ds_read_b64_tr_b16 v[{f+2}:{f+3}], v{base} offset:{off+2048}", ("F", n))
    ev = {}
    def at(n, fn): ev.setdefault(n, []).append(fn)
    for i in range(8): at(33 + i, (lambda i=i: ldx(4, i)))
    def dma(tag, m0, goff, i, wsh):
        if i % 4 == 0:
            a.e(f"s_add_u32 m0, {wsh}, {m0 + (i//4)*4096}")
            a.e(f"s_add_u32 s31, s29, {goff + (i//4)*4096}")
            a.e(f"s_add_u32 s31, s31, {wsh}")
        a.vmem(f"buffer_load_dwordx4 v{VG}, s[8:11], s31 offen offset:{(i%4)*1024} lds", tag)
    if isA:
        for i in range(4): at(60 + 2 * i, (lambda i=i: dma(("KV", -1), 32768 + 16384, 0, i, "s35")))
        for i in range(8): at(92 + 2 * i, (lambda i=i: dma(("KV", 0), 65536, 16384, i, "s37")))
        for i in range(8): at(124 + 2 * i, (lambda i=i: dma(("KV", 1), 98304, 16384 + 32768, i, "s37")))
    for i in range(16): at(100 + i, (lambda i=i: a.e(f"v_mov_b32 v{NM+i}, 0")))
    for i in range(32): at(66 + i, (lambda i=i: a.e(f"v_mov_b32 v{O_+32+i}, 0")))
    for n in range(DQ): rdq(n)
    for n, (st, ks, db) in enumerate(seq):
        for fn in ev.get(n, []): fn()
        if n + DQ < len(seq): rdq(n + DQ)
        if ks == 0 and db == 0: a.wait_vm(("X", st))
        a.wait_lg(("F", n))
        f = FR + 4 * (n % NF)
        d = S_ + 16 * db
        mf(a, d, f, XB[st] + 4 * ks, "0" if (st == 0 and ks == 0) else rng16(d))
    a.e(f"s_add_u32 s29, s29, {16384 + 2*32768}")
    a.e(f"s_add_u32 s29, s29, s37")
    a.e(f"s_mov_b32 s30, s37")
    if isA: a.wait_vm(("KV", -1))
    a.e("s_barrier")
    def rdK(n, off0):
        f = FR + 4 * (n % NF)
        a.ds(f"ds_read_b128 v[{f}:{f+3}], v{VB} offset:{off0 + 16384 + n*1024}", ("F", n % 32))
    def rdV(n, off0):
        f = FR + 4 * (n % NF)
        ks, db = (n - 16) // 4, (n - 16) % 4
        a.ds(f"ds_read_b128 v[{f}:{f+3}], v{VB} offset:{off0 + (db*4+ks)*1024}", ("F", n % 32))
    for n in range(D): rdK(n, 32768)
    a.e(f"v_mov_b32 v{VT0}, {fx(LOG2E * 128 ** -0.5)}")
    for j in range(32):
        a.e(f"v_mul_f32 v{S_+2*j}, v{VT0}, v{S_+2*j}")
        a.e(f"v_mul_f32 v{S_+2*j+1}, v{VT0}, v{S_+2*j+1}")
        a.e(f"v_cvt_pk_bf16_f32 v{Q_+j}, v{S_+2*j}, v{S_+2*j+1}")
    a.e(f"v_mov_b32 v{VL0}, 0")
    a.e(f"v_mov_b32 v{VL1}, 0")
    def maskinit(buf):
        ops = []
        for r in range(32):
            c = 32 * (r // 16) + 8 * ((r % 16) // 4) + (r % 4)
            sp = 44 + 2 * (r % 4)
            a.e(f"v_cmp_le_i32 s[{sp}:{sp+1}], {c}, v{VQ}")
            if r >= 3:
                q = r - 3; sq = 44 + 2 * (q % 4)
                a.e(f"v_cndmask_b32 v{buf+q}, v{VNEG}, v{NM}, s[{sq}:{sq+1}]")
        for q in range(29, 32):
            sq = 44 + 2 * (q % 4)
            a.e(f"v_cndmask_b32 v{buf+q}, v{VNEG}, v{NM}, s[{sq}:{sq+1}]")
    def qk0(masked):
        for n in range(16):
            if n + D < 16: rdK(n + D, 32768)
            if n + D == 16:
                if isA: a.wait_vm(("KV", 0))
                a.e("s_barrier")
                a.e(f"v_xor_b32 v{VB}, 0x10000, v{VB}")
            if n + D >= 16: rdK2(n + D - 16)
            a.e(f"v_mov_b32 v{O_+2*n}, 0")
            a.e(f"v_mov_b32 v{O_+2*n+1}, 0")
            a.wait_lg(("F", n))
            kb, ds_ = n // 8, n % 8
            d = S_ + 16 * kb
            mf(a, d, FR + 4 * (n % NF), Q_ + 4 * ds_, rng16(d) if (ds_ or masked) else rng16(NM))
    def rdK2(n):
        f = FR + 4 * (n % NF)
        a.ds(f"ds_read_b128 v[{f}:{f+3}], v{VB} offset:{16384 + n*1024}", ("G", n))
    st0 = (list(a.vm), list(a.lg))
    if not isA:
        a.e("s_cmp_lg_u32 s28, 0")
        a.e(f"s_cbranch_scc1 Lat{T}_q0")
        maskinit(S_)
        qk0(True)
        a.e(f"s_branch Lat{T}_q1")
        a.label(f"Lat{T}_q0")
        a.vm, a.lg = list(st0[0]), list(st0[1])
    qk0(False)
    a.label(f"Lat{T}_q1")
    a.nop(12)
    def maxops(buf):
        ops = [f"v_max3_f32 v{VMX}, v{buf}, v{buf+1}, v{buf+2}"]
        for k in range(14):
            ops.append(f"v_max3_f32 v{VMX}, v{VMX}, v{buf+3+2*k}, v{buf+4+2*k}")
        ops.append(f"v_max_f32 v{VMX}, v{VMX}, v{buf+31}")
        return ops
    for o in maxops(S_): a.e(o)
    a.e(f"v_mov_b32 v{VT0}, v{VMX}")
    a.e(f"v_permlane32_swap_b32 v{VT0}, v{VMX}")
    a.e(f"v_max_f32 v{VMX}, v{VMX}, v{VT0}")
    for i in range(16): a.e(f"v_sub_f32 v{NM+i}, 0, v{VMX}")
    for i in range(32): a.e(f"v_sub_f32 v{S_+i}, v{S_+i}, v{VMX}")
    def entry_state():
        a.lg = [("F", n) for n in range(D)]
        a.vm = [("KV", "next")] * 8 if isA else []
        a.hist = []
    resc = []
    def step(par, masked):
        cur, nxt = S_ + 32 * par, S_ + 32 * (1 - par)
        off0 = 32768 * par
        dodma = isA and (not masked or par == 1)
        if masked: maskinit(nxt)
        slots = [[] for _ in range(32)]
        cost = [0] * 32
        eslot = {}
        e = 0
        for s in range(32):
            tgt = min(32, -(-32 * (s + 1) // 26))
            while e < tgt:
                slots[s].append(("E", e)); cost[s] += 8; eslot[e] = s; e += 1
        for j in range(16):
            s = eslot[2 * j + 1] + 1
            slots[s].append(("C", j)); cost[s] += 4
        mo = maxops(nxt)
        ms = list(range(10, 17)) + list(range(18, 27))
        for k, o in enumerate(mo):
            slots[ms[k]].append(("M", o)); cost[ms[k]] += 4
        if dodma:
            for i in range(8): cost[1 + 2 * i] += 6
        e = 0
        rem = sum(cost) + 32 * 4
        for s in range(32):
            tgt = rem / (32 - s)
            while e < 32 and eslot[e] < s and (cost[s] + 4 <= tgt + 2 or s == 31):
                slots[s].append(("A", e)); cost[s] += 4; e += 1
            rem -= cost[s]
        assert e == 32
        for n in range(32):
            m = n + D
            if m < 16: rdK(m, off0)
            elif m < 32: rdV(m, off0)
            else:
                if m == 32:
                    if isA: a.wait_vm(("KV", "next"))
                    a.e("s_barrier")
                    if par == 1: a.e(f"v_xor_b32 v{VB}, 0x10000, v{VB}")
                if not masked:
                    f = FR + 4 * (m % NF)
                    a.ds(f"ds_read_b128 v[{f}:{f+3}], v{VB} offset:{32768*(1-par) + 16384 + (m-32)*1024}", ("G", m - 32))
            if dodma and n % 2 == 1 and n < 16:
                i = n // 2
                if i % 4 == 0:
                    a.e(f"s_add_u32 m0, s30, {(i//4)*4096}")
                    if i: a.e(f"s_add_u32 s29, s29, 4096")
                    else: a.e("s_nop 0")
                a.vmem(f"buffer_load_dwordx4 v{VG}, s[8:11], s29 offen offset:{(i%4)*1024} lds", ("KV", "new"))
                if i == 7:
                    a.e(f"s_add_u32 s29, s29, {32768-4096}")
                    a.e(f"s_add_u32 s30, s30, 32768")
                    a.e(f"s_and_b32 s30, s30, 0x1ffff")
            for k, x in slots[n]:
                if k == "E": a.e(f"v_exp_f32 v{cur+x}, v{cur+x}")
                elif k == "C": a.e(f"v_cvt_pk_bf16_f32 v{P_+x}, v{cur+2*x}, v{cur+2*x+1}")
                elif k == "M": a.e(x)
                else:
                    l = VL0 if x % 2 == 0 else VL1
                    a.e(f"v_add_f32 v{l}, v{l}, v{cur+x}")
            if n == 28: a.e(f"v_cmp_lt_f32 vcc, {fx(THR)}, v{VMX}")
            a.wait_lg(("F", n))
            f = FR + 4 * (n % NF)
            if n < 16:
                kb, ds_ = n // 8, n % 8
                d = nxt + 16 * kb
                mf(a, d, f, Q_ + 4 * ds_, rng16(d) if (ds_ or masked) else rng16(NM))
            else:
                ks, db = (n - 16) // 4, (n - 16) % 4
                d = O_ + 16 * db
                mf(a, d, f, P_ + 4 * ks, rng16(d))
        lab = a.newlabel(f"Lat{T}_rs")
        a.e(f"s_cbranch_vccnz {lab}")
        a.label(lab + "r")
        resc.append((lab, nxt))
    def final(par, barrier):
        cur = S_ + 32 * par
        off0 = 32768 * par
        a.lg = []; a.hist = []
        for m in range(16, 16 + D): rdV(m, off0)
        def grp(g):
            ops = []
            for e in range(8 * g, 8 * g + 8):
                ops.append(f"v_exp_f32 v{cur+e}, v{cur+e}")
            for j in range(4 * g, 4 * g + 4):
                ops.append(f"v_cvt_pk_bf16_f32 v{P_+j}, v{cur+2*j}, v{cur+2*j+1}")
            return ops
        def adds(g):
            return [f"v_add_f32 v{VL0 if e%2==0 else VL1}, v{VL0 if e%2==0 else VL1}, v{cur+e}" for e in range(8 * g, 8 * g + 8)]
        for o in grp(0): a.e(o)
        for n in range(16, 32):
            g = (n - 16) // 4
            if n + D < 32: rdV(n + D, off0)
            if n + D == 32 and barrier:
                if isA: a.wait_vm0()
                a.e("s_barrier")
            a.wait_lg(("F", n))
            ks, db = (n - 16) // 4, (n - 16) % 4
            d = O_ + 16 * db
            mf(a, d, FR + 4 * (n % NF), P_ + 4 * ks, rng16(d))
            ops = (grp(g + 1) if g < 3 else []) + adds(g)
            k = (n - 16) % 4
            w = -(-len(ops) // 4)
            for o in ops[k * w:(k + 1) * w]: a.e(o)
        a.e(f"s_branch Lat{T}_epi")
    if not isA:
        a.e("s_cmp_eq_u32 s28, 0")
        a.e(f"s_cbranch_scc1 Lat{T}_f0")
    a.label(f"Lat{T}_loop")
    a.e("s_cmp_eq_u32 s28, 1")
    a.e(f"s_cbranch_scc1 Lat{T}_m0")
    entry_state()
    step(0, False)
    a.e("s_cmp_eq_u32 s28, 2")
    a.e(f"s_cbranch_scc1 Lat{T}_m1")
    entry_state()
    step(1, False)
    a.e("s_sub_u32 s28, s28, 2")
    a.e(f"s_branch Lat{T}_loop")
    a.label(f"Lat{T}_m0")
    entry_state()
    step(0, True)
    final(1, not isA)
    a.label(f"Lat{T}_m1")
    entry_state()
    step(1, True)
    a.label(f"Lat{T}_f0")
    final(0, True)
    for lab, nxt in resc:
        a.label(lab)
        a.hist = []
        a.e(f"v_mov_b32 v{VT0}, v{VMX}")
        a.e(f"v_permlane32_swap_b32 v{VT0}, v{VMX}")
        a.e(f"v_max3_f32 v{VMX}, v{VMX}, v{VT0}, 0")
        a.e(f"v_sub_f32 v{VT0}, 0, v{VMX}")
        a.e(f"v_exp_f32 v{VT0}, v{VT0}")
        for i in range(16): a.e(f"v_sub_f32 v{NM+i}, v{NM+i}, v{VMX}")
        for i in range(32): a.e(f"v_sub_f32 v{nxt+i}, v{nxt+i}, v{VMX}")
        a.e(f"v_mul_f32 v{VL0}, v{VL0}, v{VT0}")
        a.e(f"v_mul_f32 v{VL1}, v{VL1}, v{VT0}")
        for i in range(64): a.e(f"v_mul_f32 v{O_+i}, v{O_+i}, v{VT0}")
        a.nop(2)
        a.e(f"s_branch {lab}r")
    a.label(f"Lat{T}_epi")
    a.hist = []
    a.e(f"v_add_f32 v{VL0}, v{VL0}, v{VL1}")
    a.e(f"v_mov_b32 v{VT0}, v{VL0}")
    a.e(f"v_permlane32_swap_b32 v{VT0}, v{VL0}")
    a.e(f"v_add_f32 v{VL0}, v{VL0}, v{VT0}")
    a.e(f"v_rcp_f32 v{VL0}, v{VL0}")
    a.nop(4)
    for db in range(4):
        for j in range(8):
            r = O_ + 16 * db + 2 * j
            a.e(f"v_mul_f32 v{r}, v{r}, v{VL0}")
            a.e(f"v_mul_f32 v{r+1}, v{r+1}, v{VL0}")
            a.e(f"v_cvt_pk_bf16_f32 v{S_+8*db+j}, v{r}, v{r+1}")
        for rh in range(2):
            r = S_ + 8 * db + 4 * rh
            a.e(f"buffer_store_dwordx4 v[{r}:{r+3}], v1, s[8:11], s36 offen offset:{rh*512}")
        if db < 3: a.e("s_add_u32 s36, s36, 4096")
    a.e("s_waitcnt vmcnt(0)")
    a.e("s_endpgm")
```

```python
from common import *

def gemm128_kernel(kind):
    a = Asm()
    wname = {"s4": "w1", "s5": "w2", "s6": "w3"}[kind]
    RS = 3456 if kind == "s6" else 1280
    NCB = 14 if kind == "s6" else 5
    SRC = {"s4": WS_XN2, "s5": WS_HS, "s6": WS_X1}[kind]
    grid = 16 * NCB
    P = kind
    load_srds(a, [(4, wname), (8, "ws")])
    a.e("v_lshrrev_b32 v1, 6, v0")
    a.e("v_and_b32 v2, 63, v0")
    a.e("v_readfirstlane_b32 s24, v1")
    a.e(f"s_cmp_ge_u32 s2, {grid}")
    a.e(f"s_cbranch_scc1 L{P}_end")
    a.e("s_and_b32 s25, s2, 15")
    a.e("s_lshr_b32 s26, s2, 4")
    a.e("s_lshl_b32 s27, s25, 2")
    a.e("s_add_u32 s27, s27, s24")
    a.e("v_bfe_u32 v4, v2, 2, 2")
    a.e(f"v_mul_u32_u24 v3, {RS}, v4")
    a.e("v_lshrrev_b32 v5, 4, v2")
    a.e("v_lshl_add_u32 v3, v5, 6, v3")
    a.e("v_and_b32 v5, 3, v2")
    a.e("v_lshl_add_u32 v3, v5, 4, v3")
    a.e("v_lshrrev_b32 v9, 5, v2")
    a.e("v_lshlrev_b32 v6, 10, v9")
    a.e("v_lshl_add_u32 v6, v4, 6, v6")
    a.e("v_bfe_u32 v10, v2, 4, 1")
    a.e("v_lshl_add_u32 v6, v10, 5, v6")
    a.e("v_lshl_add_u32 v6, v5, 3, v6")
    a.e("v_add_u32 v7, 0x10000, v6")
    a.e("v_add_u32 v8, 0x20000, v6")
    a.e("v_lshlrev_b32 v11, 4, v2")
    a.e("s_mul_i32 s28, s27, 40960")
    a.e(f"s_add_u32 s29, s28, {SRC}")
    a.e(f"s_mul_i32 s30, s24, {32*RS}")
    a.e("s_lshl_b32 s32, s26, 8")
    a.e("s_add_u32 s30, s30, s32")
    a.e("s_lshl_b32 s31, s24, 13")
    a.e("s_waitcnt lgkmcnt(0)")
    for st in range(5):
        for i in range(8):
            s = st * 8 + i
            if i % 4 == 0 and s: a.e("s_add_u32 s29, s29, 4096")
            a.vmem(f"buffer_load_dwordx4 a[{4*s}:{4*s+3}], v11, s[8:11], s29 offen offset:{(i%4)*1024}", ("B", st))
        for g in range(8):
            a.e(f"s_add_u32 m0, s31, {st*32768 + g*1024}")
            a.e(f"s_add_u32 s33, s30, {(st*128 + 4*g)*RS}")
            a.vmem(f"buffer_load_dwordx4 v3, s[4:7], s33 offen lds", ("W", st))
    EX = 112
    if kind == "s5":
        a.e(f"s_lshl_b32 s32, s26, 13")
        a.e(f"s_add_u32 s29, s28, s32")
        a.e(f"s_add_u32 s34, s29, {WS_X1}")
        a.e(f"s_add_u32 s29, s29, {WS_XN}")
        for i in range(8):
            if i == 4: a.e("s_add_u32 s29, s29, 4096")
            a.vmem(f"buffer_load_dwordx4 v[{EX+4*i}:{EX+4*i+3}], v11, s[8:11], s29 offen offset:{(i%4)*1024}", "E")
    if kind == "s6":
        a.e("v_lshlrev_b32 v12, 4, v9")
        a.e(f"s_lshl_b32 s32, s26, 9")
        a.e(f"s_add_u32 s29, s32, {WS_CS3}")
        for i in range(16):
            a.vmem(f"buffer_load_dwordx4 v[{EX+4*i}:{EX+4*i+3}], v12, s[8:11], s29 offen offset:{i*32}", "E")
        a.e("v_and_b32 v13, 31, v2")
        a.e("v_mul_u32_u24 v13, 80, v13")
        a.e(f"s_mul_i32 s29, s27, {32*80}")
        a.e(f"s_add_u32 s29, s29, {WS_ST1}")
        for i in range(5):
            a.vmem(f"buffer_load_dwordx4 v[{EX+64+4*i}:{EX+64+4*i+3}], v13, s[8:11], s29 offen offset:{i*16}", "E")
    ACC, FR, NF = 16, 80, 8
    seq = [(st, ks, db) for st in range(5) for ks in range(8) for db in range(4)]
    D = 6
    def rd(n):
        st, ks, db = seq[n]
        if ks == 0 and db == 0:
            a.wait_vm([("W", st), ("B", st)])
            a.e("s_barrier")
        f = FR + 4 * (n % NF)
        base = [6, 6, 7, 7, 8][st]
        off = (st % 2) * 32768 + ks * 4096 + db * 256
        a.ds(f"ds_read_b64_tr_b16 v[{f}:{f+1}], v{base} offset:{off}", ("F", n))
        a.ds(f"ds_read_b64_tr_b16 v[{f+2}:{f+3}], v{base} offset:{off+2048}", ("F", n))
    for n in range(D): rd(n)
    for n, (st, ks, db) in enumerate(seq):
        if n + D < len(seq): rd(n + D)
        a.wait_lg(("F", n))
        f = FR + 4 * (n % NF)
        s = st * 8 + ks
        c = "0" if s == 0 else f"v[{ACC+16*db}:{ACC+16*db+15}]"
        a.e(f"v_mfma_f32_32x32x16_bf16 v[{ACC+16*db}:{ACC+16*db+15}], v[{f}:{f+3}], a[{4*s}:{4*s+3}], {c}")
    a.wait_vm0()
    a.nop(12)
    T = 80
    if kind == "s4":
        a.e(f"v_mov_b32 v12, {fx(GC2)}")
        for g in range(0, 64, 8):
            for l in interleave([gelu_ops(ACC + g + i, T + i, 12) for i in range(8)]): a.e(l)
        for i in range(32):
            a.e(f"v_cvt_pk_bf16_f32 v{ACC+i}, v{ACC+2*i}, v{ACC+2*i+1}")
        a.e("v_and_b32 v13, 31, v2")
        a.e("s_lshl_b32 s32, s27, 5")
        a.e("v_add_u32 v13, s32, v13")
        a.e("s_lshl_b32 s33, s26, 3")
        for j in range(8):
            a.e(f"s_add_u32 s34, s33, {j}")
            a.e("s_mov_b32 s35, 1")
            a.e("s_cmp_ge_u32 s34, 10")
            a.e("s_cselect_b32 s35, -1, s35")
            a.e("s_cmp_ge_u32 s34, 20")
            a.e("s_cselect_b32 s35, 2, s35")
            a.e("s_cmp_ge_u32 s34, 30")
            a.e("s_cselect_b32 s35, -2, s35")
            a.e("v_add_u32 v14, s35, v13")
            a.e("v_cmp_gt_u32 vcc, 0x800, v14")
            a.e("v_and_b32 v14, 0x7ff, v14")
            a.e("v_lshrrev_b32 v15, 5, v14")
            a.e("v_mul_u32_u24 v15, 0xa000, v15")
            a.e("v_and_b32 v14, 31, v14")
            a.e("v_lshl_add_u32 v14, v14, 4, v15")
            a.e(f"v_lshl_add_u32 v{T+j}, v9, 9, v14")
            for i in range(4):
                a.e(f"v_cndmask_b32 v{ACC+4*j+i}, 0, v{ACC+4*j+i}, vcc")
            a.e("s_lshl_b32 s34, s34, 10")
            a.e(f"s_add_u32 s34, s34, {WS_HS}")
            a.e(f"buffer_store_dwordx4 v[{ACC+4*j}:{ACC+4*j+3}], v{T+j}, s[8:11], s34 offen")
    if kind == "s5":
        a.e("v_mov_b32 v14, 0xffff0000")
        a.e("v_mov_b32 v12, 0")
        a.e("v_mov_b32 v13, 0")
        for i in range(32):
            a.e(f"v_lshlrev_b32 v{T}, 16, v{EX+i}")
            a.e(f"v_and_b32 v{T+1}, v14, v{EX+i}")
            a.e(f"v_add_f32 v{ACC+2*i}, v{ACC+2*i}, v{T}")
            a.e(f"v_add_f32 v{ACC+2*i+1}, v{ACC+2*i+1}, v{T+1}")
            a.e(f"v_add_f32 v12, v12, v{ACC+2*i}")
            a.e(f"v_fmac_f32 v13, v{ACC+2*i}, v{ACC+2*i}")
            a.e(f"v_add_f32 v12, v12, v{ACC+2*i+1}")
            a.e(f"v_fmac_f32 v13, v{ACC+2*i+1}, v{ACC+2*i+1}")
            a.e(f"v_cvt_pk_bf16_f32 v{EX+i}, v{ACC+2*i}, v{ACC+2*i+1}")
        for i in range(8):
            if i == 4: a.e("s_add_u32 s34, s34, 4096")
            a.e(f"buffer_store_dwordx4 v[{EX+4*i}:{EX+4*i+3}], v11, s[8:11], s34 offen offset:{(i%4)*1024}")
        a.e("v_and_b32 v15, 31, v2")
        a.e("v_mul_u32_u24 v15, 80, v15")
        a.e("v_lshl_add_u32 v15, v9, 3, v15")
        a.e(f"s_mul_i32 s29, s27, {32*80}")
        a.e("s_lshl_b32 s32, s26, 4")
        a.e("s_add_u32 s29, s29, s32")
        a.e(f"s_add_u32 s29, s29, {WS_ST1}")
        a.e(f"buffer_store_dwordx2 v[12:13], v15, s[8:11], s29 offen")
    if kind == "s6":
        S = EX + 64
        for i in range(1, 10):
            a.e(f"v_add_f32 v{S}, v{S}, v{S+2*i}")
            a.e(f"v_add_f32 v{S+1}, v{S+1}, v{S+2*i+1}")
        a.e(f"v_mul_f32 v{S}, {fx(1/640)}, v{S}")
        a.e(f"v_mul_f32 v{S+1}, {fx(1/640)}, v{S+1}")
        a.e(f"v_fma_f32 v{S+1}, -v{S}, v{S}, v{S+1}")
        a.e(f"v_max_f32 v{S+1}, 0, v{S+1}")
        a.e(f"v_add_f32 v{S+1}, {fx(1e-5)}, v{S+1}")
        a.e(f"v_rsq_f32 v{S+1}, v{S+1}")
        a.e(f"v_mov_b32 v12, {fx(GC2)}")
        for i in range(64):
            a.e(f"v_fma_f32 v{ACC+i}, -v{S}, v{EX+i}, v{ACC+i}")
            a.e(f"v_mul_f32 v{ACC+i}, v{ACC+i}, v{S+1}")
        for g in range(0, 64, 8):
            for l in interleave([gelu_ops(ACC + g + i, T + i, 12) for i in range(8)]): a.e(l)
        for i in range(32):
            a.e(f"v_cvt_pk_bf16_f32 v{ACC+i}, v{ACC+2*i}, v{ACC+2*i+1}")
        a.e("v_and_b32 v13, 15, v2")
        a.e("v_lshlrev_b32 v13, 4, v13")
        a.e("v_lshl_add_u32 v13, v10, 10, v13")
        a.e("v_lshl_add_u32 v13, v9, 8, v13")
        a.e("s_lshr_b32 s32, s27, 1")
        a.e("s_mul_i32 s32, s32, 54")
        a.e("s_lshl_b32 s33, s26, 2")
        a.e("s_add_u32 s32, s32, s33")
        a.e("s_lshl_b32 s32, s32, 12")
        a.e("s_and_b32 s33, s27, 1")
        a.e("s_lshl_b32 s33, s33, 11")
        a.e("s_add_u32 s32, s32, s33")
        a.e(f"s_add_u32 s32, s32, {WS_H3}")
        for db in range(4):
            if db == 2:
                a.e("s_cmp_eq_u32 s26, 13")
                a.e(f"s_cbranch_scc1 L{P}_end")
            for rh in range(2):
                r = ACC + 8 * db + 4 * rh
                a.e(f"buffer_store_dwordx4 v[{r}:{r+3}], v13, s[8:11], s32 offen offset:{rh*512}")
            a.e("s_add_u32 s32, s32, 4096")
    a.label(f"L{P}_end")
    a.e("s_endpgm")
    return Kern(f"{kind}_kernel", grid, 256, 163840, a.text(), 200 + 160, 200, 40)
```

```python
from common import *

def kv_kernel(sc1=False):
    a = Asm()
    grid = 256
    SC = " sc1" if sc1 else ""
    load_srds(a, [(4, "ckv"), (8, "ws"), (12, "wuk"), (16, "wuv")])
    a.e("v_lshrrev_b32 v6, 6, v0")
    a.e("v_and_b32 v7, 63, v0")
    a.e("v_readfirstlane_b32 s24, v6")
    a.e(f"s_cmp_ge_u32 s2, {grid}")
    a.e("s_cbranch_scc1 Lkv_end")
    a.e("s_and_b32 s25, s2, 7")
    a.e("s_lshl_b32 s25, s25, 2")
    a.e("s_bfe_u32 s27, s2, 0x20003")
    a.e("s_add_u32 s25, s25, s27")
    a.e("s_lshr_b32 s26, s2, 5")
    TMP = 96
    a.e(f"v_lshrrev_b32 v6, 3, v7")
    a.e(f"v_and_b32 v5, 7, v7")
    a.e(f"v_lshrrev_b32 v4, 1, v6")
    a.e(f"v_xor_b32 v5, v5, v4")
    a.e(f"v_lshlrev_b32 v6, 10, v6")
    a.e(f"v_lshl_add_u32 v{TMP}, v5, 4, v6")
    a.e(f"v_xor_b32 v{TMP+1}, 64, v{TMP}")
    a.e("s_lshl_b32 s28, s26, 18")
    a.e("s_lshl_b32 s27, s24, 15")
    a.e("s_add_u32 s28, s28, s27")
    a.e("s_lshl_b32 s29, s24, 12")
    a.e("v_bfe_u32 v4, v7, 2, 2")
    a.e("v_and_b32 v5, 3, v7")
    a.e("v_lshlrev_b32 v6, 13, v4")
    a.e("v_lshl_add_u32 v6, v5, 4, v6")
    a.e("v_lshrrev_b32 v3, 4, v7")
    a.e("v_lshl_add_u32 v1, v3, 6, v6")
    a.e("v_bfe_u32 v3, v7, 4, 1")
    a.e("v_lshl_add_u32 v2, v3, 6, v6")
    a.e("v_lshrrev_b32 v6, 5, v7")
    a.e("v_lshl_add_u32 v2, v6, 20, v2")
    a.e("s_lshl_b32 s30, s24, 17")
    a.e("s_lshl_b32 s27, s25, 8")
    a.e("s_add_u32 s30, s30, s27")
    a.e("s_waitcnt lgkmcnt(0)")
    def dmaA(c, slot, i):
        a.e(f"s_add_u32 m0, s29, {slot*32768 + i*1024}")
        a.e(f"s_add_u32 s33, s28, {i*8192 + c*128}")
        a.vmem(f"buffer_load_dwordx4 v{TMP+(i&1)}, s[4:7], s33 offen lds", ("A", c))
    def dmaW(j, slot, i):
        a.e(f"s_add_u32 m0, s29, {slot*32768 + i*1024}")
        if j < 4:
            a.e(f"s_add_u32 s33, s30, {(j*128 + 4*i)*8192}")
            a.vmem(f"buffer_load_dwordx4 v1, s[12:15], s33 offen lds", ("W", j))
        else:
            ch, kk = (j - 4) >> 1, (j - 4) & 1
            a.e(f"s_add_u32 s33, s30, {(kk*256 + 4*i)*8192 + ch*128}")
            a.vmem(f"buffer_load_dwordx4 v2, s[16:19], s33 offen lds", ("W", j))
    for i in range(4): dmaA(0, 0, i)
    for i in range(4): dmaA(1, 1, i)
    for i in range(4): dmaW(0, 2, i)
    for i in range(4): dmaA(2, 3, i)
    for i in range(4): dmaA(3, 4, i)
    a.e("v_lshlrev_b32 v3, 5, v3")
    a.e("v_lshl_add_u32 v3, v6, 11, v3")
    a.e("v_lshl_add_u32 v3, v4, 6, v3")
    a.e("v_lshl_add_u32 v3, v5, 3, v3")
    AR = TMP + 2
    a.e(f"v_and_b32 v4, 31, v7")
    a.e(f"v_bfe_u32 v5, v7, 1, 3")
    a.e(f"v_xor_b32 v5, v5, v6")
    a.e(f"v_lshlrev_b32 v5, 4, v5")
    a.e(f"v_lshl_add_u32 v5, v4, 7, v5")
    a.e(f"v_add_u32 v5, s29, v5")
    for k4 in range(4):
        a.e(f"v_xor_b32 v{AR+k4}, {k4*32}, v5")
        a.e(f"v_add_u32 v{AR+4+k4}, 0x18000, v{AR+k4}")
    a.e("v_add_u32 v4, 0x10000, v3")
    a.e("v_add_u32 v5, 0x20000, v3")
    a.e("v_lshlrev_b32 v0, 4, v7")
    a.e("s_lshl_b32 s34, s25, 20")
    a.e("s_lshl_b32 s27, s26, 17")
    a.e("s_add_u32 s34, s34, s27")
    a.e("s_lshr_b32 s27, s24, 1")
    a.e("s_lshl_b32 s27, s27, 15")
    a.e("s_add_u32 s34, s34, s27")
    a.e("s_and_b32 s27, s24, 1")
    a.e("s_lshl_b32 s35, s27, 11")
    a.e("s_add_u32 s35, s35, s34")
    a.e("s_add_u32 s35, s35, 16384")
    a.e("s_lshl_b32 s27, s27, 13")
    a.e("s_add_u32 s34, s34, s27")
    def rdA(c, slot, k4):
        s = 4 * c + k4
        if slot < 3: r, off = AR + k4, slot * 32768
        else: r, off = AR + 4 + k4, (slot - 3) * 32768
        a.ds(f"ds_read_b128 a[{4*s}:{4*s+3}], v{r} offset:{off}", ("RA", c))
    a.wait_vm(("A", 0))
    for k4 in range(4): rdA(0, 0, k4)
    a.wait_vm(("A", 1))
    for k4 in range(4): rdA(1, 1, k4)
    a.wait_lg0()
    for i in range(4): dmaW(1, 0, i)
    for i in range(4): dmaA(4, 1, i)
    wslot = {0: 2, 1: 0, 2: 4, 3: 1, 4: 3, 5: 2, 6: 0, 7: 4}
    FR, NF, D = 8, 6, 5
    KACC, V1, V2 = 32, 96, 32
    seq = []
    for j in range(4):
        for ks in range(8):
            for db in range(4): seq.append((j, ks, db))
    for j in range(4, 8):
        for ks in range(16):
            for db in range(2): seq.append((j, ks, db))
    def rd(n):
        j, ks, db = seq[n]
        if ks == 0 and db == 0:
            a.wait_vm(("W", j))
            a.e("s_barrier")
        f = FR + 4 * (n % NF)
        sl = wslot[j]
        base = [3, 3, 4, 4, 5][sl]
        off = (sl % 2) * 32768 + (ks % 8) * 4096 + db * 256 + (ks // 8) * 512
        a.ds(f"ds_read_b64_tr_b16 v[{f}:{f+1}], v{base} offset:{off}", ("F", n))
        a.ds(f"ds_read_b64_tr_b16 v[{f+2}:{f+3}], v{base} offset:{off+1024}", ("F", n))
    ev = {}
    def at(n, fn): ev.setdefault(n, []).append(fn)
    def sched_rdA(n0, cs, slots):
        first = True
        n = n0
        for c, sl in zip(cs, slots):
            at(n, (lambda c=c: a.wait_vm(("A", c))))
            for k4 in range(4):
                at(n + k4 // 2, (lambda c=c, sl=sl, k4=k4: rdA(c, sl, k4)))
            n += 2
    def sched_dma(n0, fn, idx, slot, dep=None):
        for i in range(4):
            if dep is not None and i == 0: at(n0, (lambda dep=dep: a.wait_lg(dep)))
            at(n0 + i, (lambda i=i: fn(idx, slot, i)))
    sched_rdA(1, [2, 3], [3, 4])
    sched_dma(9, dmaA, 5, 3, [("RA", 2)])
    sched_dma(13, dmaW, 2, 4, [("RA", 3)])
    sched_rdA(22, [4], [1])
    sched_dma(30, dmaA, 6, 1, [("RA", 4)])
    sched_rdA(38, [5], [3])
    sched_dma(44, dmaA, 7, 3, [("RA", 5)])
    sched_rdA(55, [6], [1])
    sched_dma(61, dmaW, 3, 1, [("RA", 6)])
    sched_dma(65, dmaW, 5, 2)
    sched_rdA(70, [7], [3])
    sched_dma(76, dmaW, 4, 3, [("RA", 7)])
    sched_dma(94, dmaW, 6, 0)
    sched_dma(126, dmaW, 7, 4)
    def pack(n0, acc, ndb, store):
        n = n0
        for db in range(ndb):
            for i in range(8):
                r = acc + 16 * db
                at(n + i // 2, (lambda r=r, i=i: a.e(f"v_cvt_pk_bf16_f32 v{r+i}, v{r+2*i}, v{r+2*i+1}")))
            at(n + 4, (lambda db=db: store(db, 0)))
            at(n + 5, (lambda db=db: store(db, 1)))
            n += 6
    def stK(db, rh):
        r = KACC + 16 * db + 4 * rh
        ds_ = 2 * db + rh
        if ds_ == 4: a.e("s_add_u32 s34, s34, 4096")
        a.vmem(f"buffer_store_dwordx4 v[{r}:{r+3}], v0, s[8:11], s34 offen offset:{(ds_%4)*1024}{SC}", "ST")
    def stV(acc):
        def f(db, rh):
            r = acc + 16 * db + 4 * rh
            a.vmem(f"buffer_store_dwordx4 v[{r}:{r+3}], v0, s[8:11], s35 offen offset:{rh*1024}{SC}", "ST")
            if rh == 1: a.e("s_add_u32 s35, s35, 4096")
        return f
    pack(131, KACC, 4, stK)
    pack(195, V1, 2, stV(V1))
    pack(257, V2, 2, stV(V2))
    for n in range(D): rd(n)
    for n in range(len(seq) + 16):
        for fn in ev.get(n, []): fn()
        if n >= len(seq):
            if n == len(seq): a.nop(12)
            continue
        j, ks, db = seq[n]
        if n + D < len(seq): rd(n + D)
        a.wait_lg(("F", n))
        f = FR + 4 * (n % NF)
        if j < 4:
            s = j * 8 + ks
            if ks == 0 and db == 0: a.wait_lg([("RA", 2 * j), ("RA", 2 * j + 1)])
            d = f"v[{KACC+16*db}:{KACC+16*db+15}]"
            c = "0" if s == 0 else d
            a.e(f"v_mfma_f32_32x32x16_bf16 {d}, v[{f}:{f+3}], a[{4*s}:{4*s+3}], {c}")
        else:
            ch, kk = (j - 4) >> 1, (j - 4) & 1
            s = kk * 16 + ks
            acc = V1 if ch == 0 else V2
            d = f"v[{acc+16*db}:{acc+16*db+15}]"
            c = "0" if s == 0 else d
            a.e(f"v_mfma_f32_32x32x16_bf16 {d}, a[{4*s}:{4*s+3}], v[{f}:{f+3}], {c}")
    a.label("Lkv_end")
    a.e("s_endpgm")
    return Kern("kv_kernel", grid, 512, 163840, a.text(), 256, 128, 40)
```

```python
from common import *

def l3_kernel():
    a = Asm()
    grid = 256
    load_srds(a, [(4, "x"), (8, "ws"), (12, "out")])
    a.e("v_lshrrev_b32 v1, 6, v0")
    a.e("v_and_b32 v2, 63, v0")
    a.e("v_readfirstlane_b32 s24, v1")
    a.e(f"s_cmp_ge_u32 s2, {grid}")
    a.e("s_cbranch_scc1 Ll3_end")
    a.e("s_bfe_u32 s25, s2, 0x20001")
    a.e("s_lshl_b32 s25, s25, 3")
    a.e("s_lshr_b32 s27, s2, 5")
    a.e("s_add_u32 s25, s25, s27")
    a.e("s_and_b32 s26, s2, 1")
    a.e("s_lshl_b32 s26, s26, 2")
    a.e("s_bfe_u32 s27, s2, 0x20003")
    a.e("s_add_u32 s26, s26, s27")
    a.e("v_lshlrev_b32 v3, 4, v2")
    a.e("v_add_u32 v4, 0x1000, v3")
    a.e("s_mul_i32 s28, s24, 21")
    a.e("s_cmp_eq_u32 s24, 5")
    a.e("s_cselect_b32 s28, 106, s28")
    a.e("s_sub_u32 s27, s24, 6")
    a.e("s_mul_i32 s27, s27, 27")
    a.e("s_cmp_ge_u32 s24, 6")
    a.e("s_cselect_b32 s28, s27, s28")
    a.e("s_cselect_b32 s29, 54, 128")
    a.e(f"s_mov_b32 s30, {WS_CTX}")
    a.e(f"s_cselect_b32 s30, {WS_H3}, s30")
    a.e(f"s_mov_b32 s31, {WS_WOP}")
    a.e(f"s_cselect_b32 s31, {WS_W4P}, s31")
    a.e("s_mul_i32 s32, s25, s29")
    a.e("s_add_u32 s32, s32, s28")
    a.e("s_lshl_b32 s32, s32, 12")
    a.e("s_add_u32 s30, s30, s32")
    a.e("s_mul_i32 s32, s26, s29")
    a.e("s_add_u32 s32, s32, s28")
    a.e("s_mul_i32 s32, s32, 5120")
    a.e("s_add_u32 s31, s31, s32")
    a.e("v_and_b32 v5, 15, v2")
    a.e("v_lshrrev_b32 v6, 4, v2")
    a.e("v_mul_u32_u24 v7, 1280, v5")
    a.e("v_lshl_add_u32 v7, v6, 3, v7")
    a.e("v_lshlrev_b32 v8, 4, v5")
    a.e("v_and_b32 v9, 1, v6")
    a.e("v_lshl_add_u32 v8, v9, 9, v8")
    a.e("v_lshrrev_b32 v9, 1, v6")
    a.e("v_lshl_add_u32 v8, v9, 3, v8")
    a.e("s_and_b32 s33, s24, 3")
    a.e("s_lshr_b32 s34, s24, 2")
    a.e("s_lshl_b32 s35, s25, 2")
    a.e("s_add_u32 s35, s35, s33")
    a.e("s_mul_i32 s35, s35, 20480")
    a.e("s_mul_i32 s36, s26, 160")
    a.e("s_add_u32 s35, s35, s36")
    a.e("s_lshl_b32 s36, s34, 5")
    a.e("s_add_u32 s35, s35, s36")
    a.e("s_lshl_b32 s36, s25, 1")
    a.e("s_lshr_b32 s37, s33, 1")
    a.e("s_add_u32 s36, s36, s37")
    a.e("s_mul_i32 s36, s36, 40")
    a.e("s_mul_i32 s37, s26, 5")
    a.e("s_add_u32 s36, s36, s37")
    a.e("s_add_u32 s36, s36, s34")
    a.e("s_lshl_b32 s36, s36, 10")
    a.e("s_and_b32 s37, s33, 1")
    a.e("s_lshl_b32 s37, s37, 8")
    a.e("s_add_u32 s36, s36, s37")
    a.e(f"s_add_u32 s36, s36, {WS_X1}")
    a.e("s_add_u32 s37, s36, 4096")
    a.e("s_waitcnt lgkmcnt(0)")
    BUF = 28
    def tb_(b, i): return BUF + 36 * b + 4 * i
    def wb_(b, i): return BUF + 36 * b + 16 + 4 * i
    def ldT(b, i):
        r = tb_(b, i)
        a.e(f"buffer_load_dwordx4 v[{r}:{r+3}], v3, s[8:11], s30 offen offset:{i*1024}")
    def ldW(b, i):
        r = wb_(b, i)
        a.e(f"buffer_load_dwordx4 v[{r}:{r+3}], v{3 if i<4 else 4}, s[8:11], s31 offen offset:{(i%4)*1024}")
    def adv():
        a.e("s_add_u32 s30, s30, 4096")
        a.e("s_add_u32 s31, s31, 5120")
    for j in range(3):
        a.e(f"buffer_load_dwordx2 v[{10+2*j}:{11+2*j}], v7, s[4:7], s35 offen offset:{64*j}")
        a.e(f"buffer_load_dwordx2 v[{16+2*j}:{17+2*j}], v8, s[8:11], s{36 if j<2 else 37} offen offset:{(2048*j)%4096}")
    a.e("s_cmp_ge_u32 s24, 6")
    a.e("s_cselect_b32 s38, 6, 5")
    a.e("s_cbranch_scc1 Ll3_p1")
    a.e("s_cmp_ge_u32 s24, 4")
    a.e("s_cbranch_scc1 Ll3_p2")
    for r in (3, 2, 1):
        a.label(f"Ll3_p{r}")
        for j in range(4):
            b = (r + j) % 4
            for i in range(5): ldW(b, i)
            for i in range(4): ldT(b, i)
            adv()
            if j == 0:
                pass
        for i in range(80):
            a.e(f"v_accvgpr_write_b32 a{i}, 0")
        a.e(f"s_branch Ll3_pos{r}b")
    def step(b, loads):
        for ni in range(5):
            for ti in range(4):
                t = ni * 4 + ti
                a.e(f"v_mfma_f32_16x16x32_bf16 a[{4*t}:{4*t+3}], v[{wb_(b,ni)}:{wb_(b,ni)+3}], v[{tb_(b,ti)}:{tb_(b,ti)+3}], a[{4*t}:{4*t+3}]")
                if loads:
                    if ti == 3 and ni < 4: ldW(b, ni)
                    if ni == 4: ldT(b, ti)
                    if ni == 4 and ti == 3:
                        ldW(b, 4); adv()
    a.label("Ll3_loop")
    for b in range(4):
        a.label(f"Ll3_pos{b}b")
        a.e("s_waitcnt vmcnt(27)")
        step(b, True)
    a.e("s_sub_u32 s38, s38, 1")
    a.e("s_cmp_lg_u32 s38, 0")
    a.e("s_cbranch_scc1 Ll3_loop")
    for b in range(4):
        a.e(f"s_waitcnt vmcnt({27-9*b})")
        step(b, False)
    a.e("s_mul_i32 s39, s24, 20480")
    a.e("v_add_u32 v4, s39, v3")
    a.nop(8)
    for t in range(20):
        a.e(f"ds_write_b128 v4, a[{4*t}:{4*t+3}] offset:{t*1024}")
    a.e("s_lshl_b32 s39, s24, 10")
    a.e("v_add_u32 v4, s39, v3")
    a.e("v_add_u32 v5, 0x14000, v4")
    a.e(f"v_mov_b32 v9, 0xffff0000")
    a.e("s_waitcnt lgkmcnt(0)")
    a.e("s_barrier")
    def rdred(j):
        for w in range(8):
            r = BUF + 32 * j + 4 * w
            off = (w % 4) * 20480 + j * 8192
            if off > 65535:
                a.e(f"ds_read_b128 v[{r}:{r+3}], v{6 if w<4 else 1} offset:{off-0x8000}")
            else:
                a.e(f"ds_read_b128 v[{r}:{r+3}], v{4 if w<4 else 5} offset:{off}")
    a.e("v_add_u32 v6, 0x8000, v4")
    a.e("v_add_u32 v1, 0x8000, v5")
    rdred(0); rdred(1)
    def fin(j):
        R = BUF + 32 * j
        T = 130
        for i in range(4):
            a.e(f"v_add_f32 v{R+i}, v{R+i}, v{R+4+i}")
            a.e(f"v_add_f32 v{R+8+i}, v{R+8+i}, v{R+12+i}")
            a.e(f"v_add_f32 v{R+16+i}, v{R+16+i}, v{R+20+i}")
            a.e(f"v_add_f32 v{R+24+i}, v{R+24+i}, v{R+28+i}")
        for i in range(4):
            a.e(f"v_add3_f32 v{R+i}, v{R+i}, v{R+8+i}, v{R+16+i}" if False else f"v_add_f32 v{R+i}, v{R+i}, v{R+8+i}")
            a.e(f"v_add_f32 v{R+i}, v{R+i}, v{R+16+i}")
        for h in range(2):
            a.e(f"v_lshlrev_b32 v{T+2*h}, 16, v{16+2*j+h}")
            a.e(f"v_and_b32 v{T+2*h+1}, v9, v{16+2*j+h}")
            a.e(f"v_lshlrev_b32 v{T+4+2*h}, 16, v{10+2*j+h}")
            a.e(f"v_and_b32 v{T+4+2*h+1}, v9, v{10+2*j+h}")
        for i in range(4): a.e(f"v_add_f32 v{T+i}, v{T+i}, v{R+24+i}")
        for i in range(4): a.e(f"v_mul_f32 v{T+8+i}, {fx(-LOG2E)}, v{T+i}")
        for i in range(4): a.e(f"v_exp_f32 v{T+8+i}, v{T+8+i}")
        for i in range(4): a.e(f"v_add_f32 v{T+8+i}, 1.0, v{T+8+i}")
        for i in range(4): a.e(f"v_rcp_f32 v{T+8+i}, v{T+8+i}")
        for i in range(4): a.e(f"v_mul_f32 v{T+i}, v{T+i}, v{T+8+i}")
        for i in range(4): a.e(f"v_fma_f32 v{T+i}, v{T+i}, v{R+i}, v{T+4+i}")
        a.e(f"v_cvt_pk_bf16_f32 v{R}, v{T}, v{T+1}")
        a.e(f"v_cvt_pk_bf16_f32 v{R+1}, v{T+2}, v{T+3}")
        a.e(f"buffer_store_dwordx2 v[{R}:{R+1}], v7, s[12:15], s35 offen offset:{64*j}")
    a.e("s_cmp_ge_u32 s24, 4")
    a.e("s_cbranch_scc1 Ll3_two")
    a.e("s_waitcnt lgkmcnt(8)")
    rdred(2)
    fin(0)
    a.e("s_waitcnt lgkmcnt(8)")
    fin(1)
    a.e("s_waitcnt lgkmcnt(0)")
    fin(2)
    a.e("s_endpgm")
    a.label("Ll3_two")
    a.e("s_waitcnt lgkmcnt(8)")
    fin(0)
    a.e("s_waitcnt lgkmcnt(0)")
    fin(1)
    a.label("Ll3_end")
    a.e("s_endpgm")
    return Kern("l3_kernel", grid, 512, 163840, a.text(), 172 + 80, 172, 48)
```

```python
from common import *

def prep_kernel():
    a = Asm()
    NLN, NPK, NCS = 64, 182, 14
    grid = NLN + NPK + NCS
    load_srds(a, [(4, "x"), (8, "ws"), (12, "wo"), (16, "w4"), (20, "w3")])
    a.e("v_lshrrev_b32 v1, 6, v0")
    a.e("v_and_b32 v2, 63, v0")
    a.e("v_readfirstlane_b32 s24, v1")
    a.e("s_waitcnt lgkmcnt(0)")
    a.e(f"s_cmp_ge_u32 s2, {grid}")
    a.e("s_cbranch_scc1 Lprep_end")
    a.e(f"s_cmp_ge_u32 s2, {NLN+NPK}")
    a.e("s_cbranch_scc1 Lprep_cs")
    a.e(f"s_cmp_ge_u32 s2, {NLN}")
    a.e("s_cbranch_scc1 Lprep_pk")
    a.e("v_and_b32 v3, 31, v2")
    a.e("v_lshrrev_b32 v4, 5, v2")
    a.e("v_mul_u32_u24 v5, 1280, v3")
    a.e("v_lshl_add_u32 v5, v4, 4, v5")
    a.e("s_mul_i32 s25, s2, 40960")
    a.e("s_mul_i32 s26, s24, 160")
    a.e("s_add_u32 s25, s25, s26")
    for i in range(5):
        a.e(f"buffer_load_dwordx4 v[{16+4*i}:{19+4*i}], v5, s[4:7], s25 offen offset:{32*i}")
    a.e("s_lshl_b32 s26, s24, 4")
    a.e("v_lshlrev_b32 v6, 7, v3")
    a.e("v_lshl_add_u32 v7, v4, 3, v6")
    a.e("v_add_u32 v7, s26, v7")
    a.e("v_mov_b32 v14, 0xffff0000")
    a.e("s_waitcnt vmcnt(0)")
    def stats(src, dst, ldsoff):
        for i in range(20):
            a.e(f"v_lshlrev_b32 v{dst+2*i}, 16, v{src+i}")
            a.e(f"v_and_b32 v{dst+2*i+1}, v14, v{src+i}")
        a.e(f"v_add_f32 v8, v{dst}, v{dst+1}")
        a.e(f"v_mul_f32 v9, v{dst}, v{dst}")
        a.e(f"v_fmac_f32 v9, v{dst+1}, v{dst+1}")
        for i in range(2, 40):
            a.e(f"v_add_f32 v8, v8, v{dst+i}")
            a.e(f"v_fmac_f32 v9, v{dst+i}, v{dst+i}")
        a.e(f"ds_write_b64 v7, v[8:9] offset:{ldsoff}")
        a.e("s_waitcnt lgkmcnt(0)")
        a.e("s_barrier")
        for i in range(8):
            a.e(f"ds_read_b128 v[{80+4*i}:{83+4*i}], v6 offset:{ldsoff+16*i}")
        a.e("s_waitcnt lgkmcnt(0)")
        a.e("v_add_f32 v8, v80, v82")
        a.e("v_add_f32 v9, v81, v83")
        for i in range(2, 16):
            a.e(f"v_add_f32 v8, v8, v{80+2*i}")
            a.e(f"v_add_f32 v9, v9, v{81+2*i}")
        a.e(f"v_mul_f32 v8, {fx(1/640)}, v8")
        a.e(f"v_mul_f32 v9, {fx(1/640)}, v9")
        a.e("v_fma_f32 v9, -v8, v8, v9")
        a.e("v_max_f32 v9, 0, v9")
        a.e(f"v_add_f32 v9, {fx(1e-5)}, v9")
        a.e("v_rsq_f32 v9, v9")
        a.e("s_nop 0")
        a.e("v_mul_f32 v8, v8, v9")
        for i in range(40):
            a.e(f"v_fma_f32 v{dst+i}, v{dst+i}, v9, -v8")
        for i in range(20):
            a.e(f"v_cvt_pk_bf16_f32 v{src+i}, v{dst+2*i}, v{dst+2*i+1}")
    def store(src, base):
        for i in range(20):
            a.e(f"v_mov_b32 v{base+i}, v{src+i}")
        a.e("s_nop 1")
        for i in range(5):
            a.e(f"v_permlane32_swap_b32 v{base+4*i}, v{base+4*i+2}")
            a.e(f"v_permlane32_swap_b32 v{base+4*i+1}, v{base+4*i+3}")
    stats(16, 40, 0)
    store(16, 112)
    a.e("v_lshlrev_b32 v10, 4, v2")
    a.e("s_mul_i32 s25, s2, 40960")
    a.e("s_mul_i32 s26, s24, 5120")
    a.e("s_add_u32 s25, s25, s26")
    a.e(f"s_add_u32 s27, s25, {WS_XN}")
    a.e(f"s_add_u32 s28, s27, 4096")
    for i in range(5):
        a.e(f"buffer_store_dwordx4 v[{112+4*i}:{115+4*i}], v10, s[8:11], s{27 if i<4 else 28} offen offset:{(1024*i)%4096}")
    stats(16, 40, 4096)
    store(16, 132)
    a.e(f"s_add_u32 s27, s25, {WS_XN2}")
    a.e(f"s_add_u32 s28, s27, 4096")
    for i in range(5):
        a.e(f"buffer_store_dwordx4 v[{132+4*i}:{135+4*i}], v10, s[8:11], s{27 if i<4 else 28} offen offset:{(1024*i)%4096}")
    a.e("s_endpgm")
    a.label("Lprep_pk")
    a.e(f"s_sub_u32 s25, s2, {NLN}")
    a.e(f"s_mov_b32 s30, {WS_WOP}")
    a.e("s_mov_b32 s31, 128")
    a.e("s_cmp_lt_u32 s25, 128")
    a.e("s_cbranch_scc1 Lprep_pk1")
    a.e("s_sub_u32 s25, s25, 128")
    a.e(f"s_mov_b32 s30, {WS_W4P}")
    a.e("s_mov_b32 s31, 54")
    a.e("s_mov_b64 s[12:13], s[16:17]")
    a.e("s_mov_b32 s14, s18")
    a.label("Lprep_pk1")
    a.e("v_lshlrev_b32 v10, 4, v2")
    a.e("s_mul_i32 s26, s25, 40960")
    a.e("s_mul_i32 s27, s24, 5120")
    a.e("s_add_u32 s26, s26, s27")
    for i in range(5):
        a.e(f"s_add_u32 m0, s27, {1024*i}")
        a.e(f"s_add_u32 s28, s26, {1024*i}")
        a.e(f"buffer_load_dwordx4 v10, s[12:15], s28 offen lds")
    a.e("v_bfe_u32 v3, v2, 2, 2")
    a.e("v_bfe_u32 v4, v2, 4, 1")
    a.e("v_lshrrev_b32 v5, 5, v2")
    a.e("v_lshl_add_u32 v3, v4, 2, v3")
    a.e("v_lshl_add_u32 v3, v5, 4, v3")
    a.e("v_mul_u32_u24 v3, 1280, v3")
    a.e("v_and_b32 v4, 3, v2")
    a.e("v_lshl_add_u32 v3, v4, 3, v3")
    a.e("s_mul_i32 s28, s24, 160")
    a.e("v_add_u32 v3, s28, v3")
    a.e("s_waitcnt vmcnt(0)")
    a.e("s_barrier")
    for i in range(5):
        a.e(f"ds_read_b64_tr_b16 v[{16+4*i}:{17+4*i}], v3 offset:{32*i}")
        a.e(f"ds_read_b64_tr_b16 v[{18+4*i}:{19+4*i}], v3 offset:{32*i+8*1280}")
    a.e("s_mul_i32 s28, s24, s31")
    a.e("s_add_u32 s28, s28, s25")
    a.e("s_mul_i32 s28, s28, 5120")
    a.e("s_add_u32 s28, s28, s30")
    a.e("s_add_u32 s29, s28, 4096")
    a.e("s_waitcnt lgkmcnt(0)")
    for i in range(5):
        a.e(f"buffer_store_dwordx4 v[{16+4*i}:{19+4*i}], v10, s[8:11], s{28 if i<4 else 29} offen offset:{(1024*i)%4096}")
    a.e("s_endpgm")
    a.label("Lprep_cs")
    a.e(f"s_sub_u32 s25, s2, {NLN+NPK}")
    a.e("v_lshlrev_b32 v3, 2, v2")
    a.e("s_lshl_b32 s26, s25, 8")
    a.e(f"s_mul_i32 s27, s24, {80*3456}")
    a.e("s_add_u32 s26, s26, s27")
    for i in range(80):
        a.e(f"buffer_load_dword v{16+i}, v3, s[20:23], s26 offen")
        a.e(f"s_add_u32 s26, s26, 3456")
    a.e("v_mov_b32 v14, 0xffff0000")
    a.e("v_mov_b32 v8, 0")
    a.e("v_mov_b32 v9, 0")
    a.e("s_waitcnt vmcnt(0)")
    for i in range(80):
        a.e(f"v_lshlrev_b32 v10, 16, v{16+i}")
        a.e(f"v_and_b32 v11, v14, v{16+i}")
        a.e(f"v_add_f32 v8, v8, v10")
        a.e(f"v_add_f32 v9, v9, v11")
    a.e("s_lshl_b32 s27, s24, 9")
    a.e("v_lshlrev_b32 v4, 3, v2")
    a.e("v_add_u32 v5, s27, v4")
    a.e("ds_write_b64 v5, v[8:9]")
    a.e("s_waitcnt lgkmcnt(0)")
    a.e("s_barrier")
    a.e("s_cmp_lg_u32 s24, 0")
    a.e("s_cbranch_scc1 Lprep_end")
    for i in range(8):
        a.e(f"ds_read_b64 v[{16+2*i}:{17+2*i}], v4 offset:{512*i}")
    a.e("s_waitcnt lgkmcnt(0)")
    for i in range(1, 8):
        a.e(f"v_add_f32 v16, v16, v{16+2*i}")
        a.e(f"v_add_f32 v17, v17, v{17+2*i}")
    a.e("s_lshl_b32 s26, s25, 9")
    a.e(f"s_add_u32 s26, s26, {WS_CS3}")
    a.e("buffer_store_dwordx2 v[16:17], v4, s[8:11], s26 offen")
    a.label("Lprep_end")
    a.e("s_endpgm")
    return Kern("prep_kernel", grid, 512, 40960, a.text(), 152, 152, 40)
```

```python
import sys
sys.path.insert(0, "dev")
from common import *
from k_prep import prep_kernel
from k_gemm import gemm128_kernel
from k_kv import kv_kernel
from k_l3 import l3_kernel
from k_attn import attn_kernel
ks = [prep_kernel(), kv_kernel(), gemm128_kernel("s4"), gemm128_kernel("s5"), gemm128_kernel("s6"), attn_kernel(), l3_kernel()]
out = sys.argv[1] if len(sys.argv) > 1 else "recurrent_scan__compressed_kv_cla__mixer_s_mlp__prompt.s"
open(out, "w").write(assemble_file(ks))
print("written", out)
```

```python
from fw import *
import struct

KA = dict(x=0, ckv=8, wq=16, wuk=24, wuv=32, wo=40, w1=56, w2=64, w3=72, w4=80, out=88, dbg=96, ws=104)
SZ = dict(x=2048*640*2, ckv=2048*512*2, wq=640*4096*2, wuk=512*4096*2, wuv=512*4096*2, wo=4096*640*2,
          w1=640*640*2, w2=640*640*2, w3=640*1728*2, w4=1728*640*2, out=2048*640*2, dbg=256, ws=0x10000000)
WS_KV = 0x0
WS_XN = 0x2100000
WS_XN2 = 0x2400000
WS_HS = 0x2700000
WS_X1 = 0x2A00000
WS_H3 = 0x2D00000
WS_CTX = 0x3400000
WS_WOP = 0x4400000
WS_W4P = 0x4900000
WS_CS3 = 0x4C00000
WS_ST1 = 0x4C10000
WS_W3P = 0x4D00000

def f2u(f):
    return struct.unpack("<I", struct.pack("<f", f))[0]
def fx(f):
    return hex(f2u(f))

LOG2E = 1.4426950408889634
GC1 = -2.0 * 0.7978845608028654 * LOG2E
GC2 = GC1 * 0.044715

def load_srds(a, lst):
    for s, n in lst:
        a.e(f"s_load_dwordx2 s[{s}:{s+1}], s[0:1], {KA[n]}")
    for s, n in lst:
        a.e(f"s_mov_b32 s{s+2}, {hex(SZ[n])}")
        a.e(f"s_mov_b32 s{s+3}, 0x00020000")

def gelu_ops(x, t, c2):
    return [f"v_mul_f32 v{t}, v{x}, v{x}",
            f"v_fmaak_f32 v{t}, v{t}, v{c2}, {fx(GC1)}",
            f"v_mul_f32 v{t}, v{t}, v{x}",
            f"v_exp_f32 v{t}, v{t}",
            f"v_add_f32 v{t}, 1.0, v{t}",
            f"v_rcp_f32 v{t}, v{t}",
            f"v_mul_f32 v{x}, v{x}, v{t}"]

def interleave(lists):
    out = []
    n = max(len(l) for l in lists)
    for i in range(n):
        for l in lists:
            if i < len(l): out.append(l[i])
    return out

class Kern:
    def __init__(self, name, grid, block, lds, text, vgpr, agpr_off, sgpr=96):
        self.name, self.grid, self.block, self.lds = name, grid, block, lds
        self.text, self.vgpr, self.agpr_off, self.sgpr = text, vgpr, agpr_off, sgpr

HDR = open("recurrent_scan__compressed_kv_cla__mixer_s_mlp__prompt.s.ref").read().split("; Override launch")[0]

def assemble_file(kerns, launches=None):
    out = HDR
    if launches is None: launches = kerns
    for k in launches:
        out += f"; @launch kernel={k.name} grid=({k.grid},1,1) block=({k.block},1,1) lds={k.lds}\n"
    out += '.amdgcn_target "amdgcn-amd-amdhsa--gfx950"\n.text\n'
    for k in kerns:
        errs = check(k.text)
        if errs:
            print(k.name, "HAZARDS:", len(errs))
            for e_ in errs[:40]: print("  ", e_)
            raise SystemExit(1)
        out += kernel_header(k.name) + k.text
    out += '.section .rodata,"a"\n'
    for k in kerns:
        out += ".p2align 6\n" + kernel_desc(k.name, k.vgpr, k.agpr_off, k.sgpr)
    return out

import os
PROF = os.environ.get("PROF", "0") == "1"
WS_PROF = 0x5000000
def stamp(a, i, real=False):
    if not PROF: return
    a.e(f"{'s_memrealtime' if real else 's_memtime'} s[{64+2*i}:{65+2*i}]")
def stamp_init(a):
    if not PROF: return
    for i in range(64, 96): a.e(f"s_mov_b32 s{i}, 0")
    stamp(a, 0); stamp(a, 14, True)
def stamp_store(a, kidx, wave="s24", srd=8, vb=16):
    if not PROF: return
    stamp(a, 13); stamp(a, 15, True)
    a.e("s_waitcnt vmcnt(0) lgkmcnt(0)")
    a.nop(12)
    for i in range(16): a.e(f"v_mov_b32 v{vb+i}, s{64+2*i}")
    a.e(f"s_lshl_b32 s64, s2, 3")
    a.e(f"s_add_u32 s64, s64, {wave}")
    a.e(f"s_lshl_b32 s64, s64, 6")
    a.e(f"s_add_u32 s64, s64, {WS_PROF + kidx*0x100000}")
    a.e(f"v_mov_b32 v{vb+16}, 0")
    a.e("s_mov_b64 exec, 1")
    for i in range(4):
        a.e(f"buffer_store_dwordx4 v[{vb+4*i}:{vb+4*i+3}], v{vb+16}, s[{srd}:{srd+3}], s64 offen offset:{16*i}")
```

```python
from common import *

S_, Q_, NM, P_, O_, FR = 16, 80, 112, 128, 144, 208
NF = 8
VB, VL0, VL1, VMX, VQ, VNEG, VG, VT0, VT1 = 7, 8, 9, 10, 11, 12, 13, 14, 15
THR = 8.0

def attn_kernel(D=7):
    a = Asm()
    a.auto = True
    grid = 256
    stamp_init(a)
    load_srds(a, [(4, "wq"), (8, "ws")])
    a.e("v_lshrrev_b32 v1, 6, v0")
    a.e("v_and_b32 v2, 63, v0")
    a.e("v_readfirstlane_b32 s24, v1")
    a.e(f"s_cmp_ge_u32 s2, {grid}")
    a.e("s_cbranch_scc1 Lat_end")
    a.e("s_and_b32 s25, s2, 7")
    a.e("s_lshl_b32 s25, s25, 2")
    a.e("s_bfe_u32 s31, s2, 0x20003")
    a.e("s_add_u32 s25, s25, s31")
    a.e("s_lshr_b32 s26, s2, 5")
    a.e("s_sub_u32 s31, 15, s26")
    a.e("s_sub_u32 s32, 7, s24")
    a.e("s_cmp_lt_u32 s24, 4")
    a.e("s_cselect_b32 s31, s31, s26")
    a.e("s_cselect_b32 s32, s24, s32")
    a.e("s_lshl_b32 s27, s31, 2")
    a.e("s_add_u32 s27, s27, s32")
    a.e("s_lshr_b32 s28, s27, 1")
    a.e("v_bfe_u32 v14, v2, 2, 2")
    a.e("v_and_b32 v15, 3, v2")
    a.e("v_lshlrev_b32 v3, 13, v14")
    a.e("v_lshl_add_u32 v3, v15, 4, v3")
    a.e("v_lshrrev_b32 v1, 4, v2")
    a.e("v_lshl_add_u32 v3, v1, 6, v3")
    a.e(f"v_lshlrev_b32 v{VG}, 4, v2")
    a.e("s_mul_i32 s33, s27, 40960")
    a.e(f"s_add_u32 s33, s33, {WS_XN}")
    a.e("s_lshl_b32 s34, s24, 17")
    a.e("s_lshl_b32 s31, s25, 8")
    a.e("s_add_u32 s34, s34, s31")
    a.e("s_lshl_b32 s35, s24, 12")
    a.e("s_waitcnt lgkmcnt(0)")
    qpos = [1, 2, 3, 0, 4]
    XB = [O_, O_ + 32, NM, Q_, O_]
    def ldx(st, i):
        if i % 4 == 0 and (st or i): a.e("s_add_u32 s33, s33, 4096")
        r = XB[st] + 4 * i
        a.vmem(f"buffer_load_dwordx4 v[{r}:{r+3}], v{VG}, s[8:11], s33 offen offset:{(i%4)*1024}", ("X", st))
    for st in range(5):
        for g in range(4):
            a.e(f"s_add_u32 m0, s35, {qpos[st]*32768 + g*1024}")
            a.e(f"s_add_u32 s31, s34, {(st*128 + 4*g)*8192}")
            a.vmem(f"buffer_load_dwordx4 v3, s[4:7], s31 offen lds", ("W", st))
        if st < 4:
            for i in range(8): ldx(st, i)
    a.e("v_lshrrev_b32 v1, 5, v2")
    a.e("v_lshlrev_b32 v4, 10, v1")
    a.e("v_lshl_add_u32 v4, v14, 6, v4")
    a.e("v_bfe_u32 v14, v2, 4, 1")
    a.e("v_lshl_add_u32 v4, v14, 5, v4")
    a.e("v_lshl_add_u32 v4, v15, 3, v4")
    a.e("v_add_u32 v5, 0x10000, v4")
    a.e("v_add_u32 v6, 0x20000, v4")
    a.e(f"v_mov_b32 v{VB}, v{VG}")
    a.e("s_and_b32 s31, s32, 1")
    a.e("s_lshl_b32 s31, s31, 5")
    a.e(f"v_and_b32 v{VQ}, 31, v2")
    a.e(f"v_add_u32 v{VQ}, s31, v{VQ}")
    a.e(f"v_lshlrev_b32 v15, 2, v1")
    a.e(f"v_sub_u32 v{VQ}, v{VQ}, v15")
    a.e(f"v_mov_b32 v{VNEG}, {fx(-1e30)}")
    a.e("v_and_b32 v15, 15, v2")
    a.e("v_lshlrev_b32 v15, 4, v15")
    a.e("v_lshl_add_u32 v15, v14, 10, v15")
    a.e("v_lshl_add_u32 v1, v1, 8, v15")
    a.e("s_lshl_b32 s29, s25, 20")
    a.e("s_lshr_b32 s36, s27, 1")
    a.e("s_lshl_b32 s36, s36, 7")
    a.e("s_lshl_b32 s31, s25, 2")
    a.e("s_add_u32 s36, s36, s31")
    a.e("s_lshl_b32 s36, s36, 12")
    a.e("s_and_b32 s31, s27, 1")
    a.e("s_lshl_b32 s31, s31, 11")
    a.e("s_add_u32 s36, s36, s31")
    a.e(f"s_add_u32 s36, s36, {WS_CTX}")
    a.e("s_lshl_b32 s37, s24, 13")
    a.e("s_cmp_ge_u32 s24, 4")
    a.e("s_cbranch_scc1 Lat_B")
    save = (list(a.vm), list(a.lg))
    body(a, True, D, qpos, XB, ldx)
    a.label("Lat_B")
    a.vm, a.lg = list(save[0]), list(save[1])
    a.hist = []
    body(a, False, D, qpos, XB, ldx)
    a.label("Lat_end")
    a.e("s_endpgm")
    print("attn auto nops:", a.nnop)
    return Kern("attn_kernel", grid, 512, 163840, a.text(), 240, 240, 100)

def mf(a, d, A, B, c):
    a.e(f"v_mfma_f32_32x32x16_bf16 v[{d}:{d+15}], v[{A}:{A+3}], v[{B}:{B+3}], {c}")
def rng16(d): return f"v[{d}:{d+15}]"

def body(a, isA, D, qpos, XB, ldx):
    T = "A" if isA else "B"
    seq = [(st, ks, db) for st in range(5) for ks in range(8) for db in range(4)]
    DQ = 6
    def rdq(n):
        st, ks, db = seq[n]
        if ks == 0 and db == 0:
            a.wait_vm(("W", st))
            a.e("s_barrier")
        f = FR + 4 * (n % NF)
        p = qpos[st]
        base = [4, 4, 5, 5, 6][p]
        off = (p % 2) * 32768 + ks * 4096 + db * 256
        a.ds(f"ds_read_b64_tr_b16 v[{f}:{f+1}], v{base} offset:{off}", ("F", n))
        a.ds(f"ds_read_b64_tr_b16 v[{f+2}:{f+3}], v{base} offset:{off+2048}", ("F", n))
    ev = {}
    def at(n, fn): ev.setdefault(n, []).append(fn)
    for i in range(8): at(33 + i, (lambda i=i: ldx(4, i)))
    def dma(tag, m0, goff, i, wsh):
        if i % 4 == 0:
            a.e(f"s_add_u32 m0, {wsh}, {m0 + (i//4)*4096}")
            a.e(f"s_add_u32 s31, s29, {goff + (i//4)*4096}")
            a.e(f"s_add_u32 s31, s31, {wsh}")
        a.vmem(f"buffer_load_dwordx4 v{VG}, s[8:11], s31 offen offset:{(i%4)*1024} lds", tag)
    if isA:
        for i in range(4): at(60 + 2 * i, (lambda i=i: dma(("KV", -1), 32768 + 16384, 0, i, "s35")))
        for i in range(8): at(92 + 2 * i, (lambda i=i: dma(("KV", 0), 65536, 16384, i, "s37")))
        for i in range(8): at(124 + 2 * i, (lambda i=i: dma(("KV", 1), 98304, 16384 + 32768, i, "s37")))
    for i in range(16): at(100 + i, (lambda i=i: a.e(f"v_mov_b32 v{NM+i}, 0")))
    for i in range(32): at(66 + i, (lambda i=i: a.e(f"v_mov_b32 v{O_+32+i}, 0")))
    for n in range(DQ): rdq(n)
    for n, (st, ks, db) in enumerate(seq):
        for fn in ev.get(n, []): fn()
        if n + DQ < len(seq): rdq(n + DQ)
        if ks == 0 and db == 0:
            a.wait_vm(("X", st))
            stamp(a, 1 + st)
        a.wait_lg(("F", n))
        f = FR + 4 * (n % NF)
        d = S_ + 16 * db
        mf(a, d, f, XB[st] + 4 * ks, "0" if (st == 0 and ks == 0) else rng16(d))
    stamp(a, 6)
    a.e(f"s_add_u32 s29, s29, {16384 + 2*32768}")
    a.e(f"s_add_u32 s29, s29, s37")
    a.e(f"s_mov_b32 s30, s37")
    if isA: a.wait_vm(("KV", -1))
    a.e("s_barrier")
    def rdK(n, off0):
        f = FR + 4 * (n % NF)
        a.ds(f"ds_read_b128 v[{f}:{f+3}], v{VB} offset:{off0 + 16384 + n*1024}", ("F", n % 32))
    def rdV(n, off0):
        f = FR + 4 * (n % NF)
        ks, db = (n - 16) // 4, (n - 16) % 4
        a.ds(f"ds_read_b128 v[{f}:{f+3}], v{VB} offset:{off0 + (db*4+ks)*1024}", ("F", n % 32))
    for n in range(D): rdK(n, 32768)
    a.e(f"v_mov_b32 v{VT0}, {fx(LOG2E * 128 ** -0.5)}")
    for j in range(32):
        a.e(f"v_mul_f32 v{S_+2*j}, v{VT0}, v{S_+2*j}")
        a.e(f"v_mul_f32 v{S_+2*j+1}, v{VT0}, v{S_+2*j+1}")
        a.e(f"v_cvt_pk_bf16_f32 v{Q_+j}, v{S_+2*j}, v{S_+2*j+1}")
    a.e(f"v_mov_b32 v{VL0}, 0")
    a.e(f"v_mov_b32 v{VL1}, 0")
    def maskinit(buf):
        ops = []
        for r in range(32):
            c = 32 * (r // 16) + 8 * ((r % 16) // 4) + (r % 4)
            sp = 44 + 2 * (r % 4)
            a.e(f"v_cmp_le_i32 s[{sp}:{sp+1}], {c}, v{VQ}")
            if r >= 3:
                q = r - 3; sq = 44 + 2 * (q % 4)
                a.e(f"v_cndmask_b32 v{buf+q}, v{VNEG}, v{NM}, s[{sq}:{sq+1}]")
        for q in range(29, 32):
            sq = 44 + 2 * (q % 4)
            a.e(f"v_cndmask_b32 v{buf+q}, v{VNEG}, v{NM}, s[{sq}:{sq+1}]")
    def qk0(masked):
        for n in range(16):
            if n + D < 16: rdK(n + D, 32768)
            if n + D == 16:
                if isA: a.wait_vm(("KV", 0))
                a.e("s_barrier")
                a.e(f"v_xor_b32 v{VB}, 0x10000, v{VB}")
            if n + D >= 16: rdK2(n + D - 16)
            a.e(f"v_mov_b32 v{O_+2*n}, 0")
            a.e(f"v_mov_b32 v{O_+2*n+1}, 0")
            a.wait_lg(("F", n))
            kb, ds_ = n // 8, n % 8
            d = S_ + 16 * kb
            mf(a, d, FR + 4 * (n % NF), Q_ + 4 * ds_, rng16(d) if (ds_ or masked) else rng16(NM))
    def rdK2(n):
        f = FR + 4 * (n % NF)
        a.ds(f"ds_read_b128 v[{f}:{f+3}], v{VB} offset:{16384 + n*1024}", ("G", n))
    st0 = (list(a.vm), list(a.lg))
    if not isA:
        a.e("s_cmp_lg_u32 s28, 0")
        a.e(f"s_cbranch_scc1 Lat{T}_q0")
        maskinit(S_)
        qk0(True)
        a.e(f"s_branch Lat{T}_q1")
        a.label(f"Lat{T}_q0")
        a.vm, a.lg = list(st0[0]), list(st0[1])
    qk0(False)
    a.label(f"Lat{T}_q1")
    a.nop(12)
    def maxops(buf):
        ops = [f"v_max3_f32 v{VMX}, v{buf}, v{buf+1}, v{buf+2}"]
        for k in range(14):
            ops.append(f"v_max3_f32 v{VMX}, v{VMX}, v{buf+3+2*k}, v{buf+4+2*k}")
        ops.append(f"v_max_f32 v{VMX}, v{VMX}, v{buf+31}")
        return ops
    for o in maxops(S_): a.e(o)
    a.e(f"v_mov_b32 v{VT0}, v{VMX}")
    a.e(f"v_permlane32_swap_b32 v{VT0}, v{VMX}")
    a.e(f"v_max_f32 v{VMX}, v{VMX}, v{VT0}")
    for i in range(16): a.e(f"v_sub_f32 v{NM+i}, 0, v{VMX}")
    for i in range(32): a.e(f"v_sub_f32 v{S_+i}, v{S_+i}, v{VMX}")
    def entry_state():
        a.lg = [("F", n) for n in range(D)]
        a.vm = [("KV", "next")] * 8 if isA else []
        a.hist = []
    resc = []
    def step(par, masked):
        cur, nxt = S_ + 32 * par, S_ + 32 * (1 - par)
        off0 = 32768 * par
        dodma = isA and (not masked or par == 1)
        if masked: maskinit(nxt)
        slots = [[] for _ in range(32)]
        cost = [0] * 32
        eslot = {}
        e = 0
        for s in range(32):
            tgt = min(32, -(-32 * (s + 1) // 26))
            while e < tgt:
                slots[s].append(("E", e)); cost[s] += 8; eslot[e] = s; e += 1
        for j in range(16):
            s = eslot[2 * j + 1] + 1
            slots[s].append(("C", j)); cost[s] += 4
        mo = maxops(nxt)
        ms = list(range(10, 17)) + list(range(18, 27))
        for k, o in enumerate(mo):
            slots[ms[k]].append(("M", o)); cost[ms[k]] += 4
        if dodma:
            for i in range(8): cost[1 + 2 * i] += 6
        e = 0
        rem = sum(cost) + 32 * 4
        for s in range(32):
            tgt = rem / (32 - s)
            while e < 32 and eslot[e] < s and (cost[s] + 4 <= tgt + 2 or s == 31):
                slots[s].append(("A", e)); cost[s] += 4; e += 1
            rem -= cost[s]
        assert e == 32
        for n in range(32):
            m = n + D
            if m < 16: rdK(m, off0)
            elif m < 32: rdV(m, off0)
            else:
                if m == 32:
                    if isA: a.wait_vm(("KV", "next"))
                    a.e("s_barrier")
                    if par == 1: a.e(f"v_xor_b32 v{VB}, 0x10000, v{VB}")
                if not masked:
                    f = FR + 4 * (m % NF)
                    a.ds(f"ds_read_b128 v[{f}:{f+3}], v{VB} offset:{32768*(1-par) + 16384 + (m-32)*1024}", ("G", m - 32))
            if dodma and n % 2 == 1 and n < 16:
                i = n // 2
                if i % 4 == 0:
                    a.e(f"s_add_u32 m0, s30, {(i//4)*4096}")
                    if i: a.e(f"s_add_u32 s29, s29, 4096")
                    else: a.e("s_nop 0")
                a.vmem(f"buffer_load_dwordx4 v{VG}, s[8:11], s29 offen offset:{(i%4)*1024} lds", ("KV", "new"))
                if i == 7:
                    a.e(f"s_add_u32 s29, s29, {32768-4096}")
                    a.e(f"s_add_u32 s30, s30, 32768")
                    a.e(f"s_and_b32 s30, s30, 0x1ffff")
            for k, x in slots[n]:
                if k == "E": a.e(f"v_exp_f32 v{cur+x}, v{cur+x}")
                elif k == "C": a.e(f"v_cvt_pk_bf16_f32 v{P_+x}, v{cur+2*x}, v{cur+2*x+1}")
                elif k == "M": a.e(x)
                else:
                    l = VL0 if x % 2 == 0 else VL1
                    a.e(f"v_add_f32 v{l}, v{l}, v{cur+x}")
            if n == 28: a.e(f"v_cmp_lt_f32 vcc, {fx(THR)}, v{VMX}")
            a.wait_lg(("F", n))
            f = FR + 4 * (n % NF)
            if n < 16:
                kb, ds_ = n // 8, n % 8
                d = nxt + 16 * kb
                mf(a, d, f, Q_ + 4 * ds_, rng16(d) if (ds_ or masked) else rng16(NM))
            else:
                ks, db = (n - 16) // 4, (n - 16) % 4
                d = O_ + 16 * db
                mf(a, d, f, P_ + 4 * ks, rng16(d))
        lab = a.newlabel(f"Lat{T}_rs")
        a.e(f"s_cbranch_vccnz {lab}")
        a.label(lab + "r")
        resc.append((lab, nxt))
    def final(par, barrier):
        cur = S_ + 32 * par
        off0 = 32768 * par
        a.lg = []; a.hist = []
        for m in range(16, 16 + D): rdV(m, off0)
        def grp(g):
            ops = []
            for e in range(8 * g, 8 * g + 8):
                ops.append(f"v_exp_f32 v{cur+e}, v{cur+e}")
            for j in range(4 * g, 4 * g + 4):
                ops.append(f"v_cvt_pk_bf16_f32 v{P_+j}, v{cur+2*j}, v{cur+2*j+1}")
            return ops
        def adds(g):
            return [f"v_add_f32 v{VL0 if e%2==0 else VL1}, v{VL0 if e%2==0 else VL1}, v{cur+e}" for e in range(8 * g, 8 * g + 8)]
        for o in grp(0): a.e(o)
        for n in range(16, 32):
            g = (n - 16) // 4
            if n + D < 32: rdV(n + D, off0)
            if n + D == 32 and barrier:
                if isA: a.wait_vm0()
                a.e("s_barrier")
            a.wait_lg(("F", n))
            ks, db = (n - 16) // 4, (n - 16) % 4
            d = O_ + 16 * db
            mf(a, d, FR + 4 * (n % NF), P_ + 4 * ks, rng16(d))
            ops = (grp(g + 1) if g < 3 else []) + adds(g)
            k = (n - 16) % 4
            w = -(-len(ops) // 4)
            for o in ops[k * w:(k + 1) * w]: a.e(o)
        a.e(f"s_branch Lat{T}_epi")
    stamp(a, 7)
    if not isA:
        a.e("s_cmp_eq_u32 s28, 0")
        a.e(f"s_cbranch_scc1 Lat{T}_f0")
    a.label(f"Lat{T}_loop")
    a.e("s_cmp_eq_u32 s28, 1")
    a.e(f"s_cbranch_scc1 Lat{T}_m0")
    entry_state()
    step(0, False)
    a.e("s_cmp_eq_u32 s28, 2")
    a.e(f"s_cbranch_scc1 Lat{T}_m1")
    entry_state()
    step(1, False)
    a.e("s_sub_u32 s28, s28, 2")
    a.e(f"s_branch Lat{T}_loop")
    a.label(f"Lat{T}_m0")
    stamp(a, 8)
    entry_state()
    step(0, True)
    final(1, not isA)
    a.label(f"Lat{T}_m1")
    stamp(a, 8)
    entry_state()
    step(1, True)
    a.label(f"Lat{T}_f0")
    final(0, True)
    for lab, nxt in resc:
        a.label(lab)
        a.hist = []
        a.e(f"v_mov_b32 v{VT0}, v{VMX}")
        a.e(f"v_permlane32_swap_b32 v{VT0}, v{VMX}")
        a.e(f"v_max3_f32 v{VMX}, v{VMX}, v{VT0}, 0")
        a.e(f"v_sub_f32 v{VT0}, 0, v{VMX}")
        a.e(f"v_exp_f32 v{VT0}, v{VT0}")
        for i in range(16): a.e(f"v_sub_f32 v{NM+i}, v{NM+i}, v{VMX}")
        for i in range(32): a.e(f"v_sub_f32 v{nxt+i}, v{nxt+i}, v{VMX}")
        a.e(f"v_mul_f32 v{VL0}, v{VL0}, v{VT0}")
        a.e(f"v_mul_f32 v{VL1}, v{VL1}, v{VT0}")
        for i in range(64): a.e(f"v_mul_f32 v{O_+i}, v{O_+i}, v{VT0}")
        a.nop(2)
        a.e(f"s_branch {lab}r")
    a.label(f"Lat{T}_epi")
    a.hist = []
    stamp(a, 9)
    a.e(f"v_add_f32 v{VL0}, v{VL0}, v{VL1}")
    a.e(f"v_mov_b32 v{VT0}, v{VL0}")
    a.e(f"v_permlane32_swap_b32 v{VT0}, v{VL0}")
    a.e(f"v_add_f32 v{VL0}, v{VL0}, v{VT0}")
    a.e(f"v_rcp_f32 v{VL0}, v{VL0}")
    a.nop(4)
    for db in range(4):
        for j in range(8):
            r = O_ + 16 * db + 2 * j
            a.e(f"v_mul_f32 v{r}, v{r}, v{VL0}")
            a.e(f"v_mul_f32 v{r+1}, v{r+1}, v{VL0}")
            a.e(f"v_cvt_pk_bf16_f32 v{S_+8*db+j}, v{r}, v{r+1}")
        for rh in range(2):
            r = S_ + 8 * db + 4 * rh
            a.e(f"buffer_store_dwordx4 v[{r}:{r+3}], v1, s[8:11], s36 offen offset:{rh*512}")
        if db < 3: a.e("s_add_u32 s36, s36, 4096")
    a.e("s_waitcnt vmcnt(0)")
    stamp_store(a, 5)
    a.e("s_endpgm")
```

```python
from common import *

def gemm128_kernel(kind):
    a = Asm()
    wname = {"s4": "w1", "s5": "w2", "s6": "w3"}[kind]
    RS = 3456 if kind == "s6" else 1280
    NCB = 14 if kind == "s6" else 5
    SRC = {"s4": WS_XN2, "s5": WS_HS, "s6": WS_X1}[kind]
    grid = 16 * NCB
    P = kind
    stamp_init(a)
    load_srds(a, [(4, wname), (8, "ws")])
    a.e("v_lshrrev_b32 v1, 6, v0")
    a.e("v_and_b32 v2, 63, v0")
    a.e("v_readfirstlane_b32 s24, v1")
    a.e(f"s_cmp_ge_u32 s2, {grid}")
    a.e(f"s_cbranch_scc1 L{P}_end")
    a.e("s_and_b32 s25, s2, 15")
    a.e("s_lshr_b32 s26, s2, 4")
    a.e("s_lshl_b32 s27, s25, 2")
    a.e("s_add_u32 s27, s27, s24")
    a.e("v_bfe_u32 v4, v2, 2, 2")
    a.e(f"v_mul_u32_u24 v3, {RS}, v4")
    a.e("v_lshrrev_b32 v5, 4, v2")
    a.e("v_lshl_add_u32 v3, v5, 6, v3")
    a.e("v_and_b32 v5, 3, v2")
    a.e("v_lshl_add_u32 v3, v5, 4, v3")
    a.e("v_lshrrev_b32 v9, 5, v2")
    a.e("v_lshlrev_b32 v6, 10, v9")
    a.e("v_lshl_add_u32 v6, v4, 6, v6")
    a.e("v_bfe_u32 v10, v2, 4, 1")
    a.e("v_lshl_add_u32 v6, v10, 5, v6")
    a.e("v_lshl_add_u32 v6, v5, 3, v6")
    a.e("v_add_u32 v7, 0x10000, v6")
    a.e("v_add_u32 v8, 0x20000, v6")
    a.e("v_lshlrev_b32 v11, 4, v2")
    a.e("s_mul_i32 s28, s27, 40960")
    a.e(f"s_add_u32 s29, s28, {SRC}")
    a.e(f"s_mul_i32 s30, s24, {32*RS}")
    a.e("s_lshl_b32 s32, s26, 8")
    a.e("s_add_u32 s30, s30, s32")
    a.e("s_lshl_b32 s31, s24, 13")
    a.e("s_waitcnt lgkmcnt(0)")
    for st in range(5):
        for i in range(8):
            s = st * 8 + i
            if i % 4 == 0 and s: a.e("s_add_u32 s29, s29, 4096")
            a.vmem(f"buffer_load_dwordx4 a[{4*s}:{4*s+3}], v11, s[8:11], s29 offen offset:{(i%4)*1024}", ("B", st))
        for g in range(8):
            a.e(f"s_add_u32 m0, s31, {st*32768 + g*1024}")
            a.e(f"s_add_u32 s33, s30, {(st*128 + 4*g)*RS}")
            a.vmem(f"buffer_load_dwordx4 v3, s[4:7], s33 offen lds", ("W", st))
    EX = 112
    if kind == "s5":
        a.e(f"s_lshl_b32 s32, s26, 13")
        a.e(f"s_add_u32 s29, s28, s32")
        a.e(f"s_add_u32 s34, s29, {WS_X1}")
        a.e(f"s_add_u32 s29, s29, {WS_XN}")
        for i in range(8):
            if i == 4: a.e("s_add_u32 s29, s29, 4096")
            a.vmem(f"buffer_load_dwordx4 v[{EX+4*i}:{EX+4*i+3}], v11, s[8:11], s29 offen offset:{(i%4)*1024}", "E")
    if kind == "s6":
        a.e("v_lshlrev_b32 v12, 4, v9")
        a.e(f"s_lshl_b32 s32, s26, 9")
        a.e(f"s_add_u32 s29, s32, {WS_CS3}")
        for i in range(16):
            a.vmem(f"buffer_load_dwordx4 v[{EX+4*i}:{EX+4*i+3}], v12, s[8:11], s29 offen offset:{i*32}", "E")
        a.e("v_and_b32 v13, 31, v2")
        a.e("v_mul_u32_u24 v13, 80, v13")
        a.e(f"s_mul_i32 s29, s27, {32*80}")
        a.e(f"s_add_u32 s29, s29, {WS_ST1}")
        for i in range(5):
            a.vmem(f"buffer_load_dwordx4 v[{EX+64+4*i}:{EX+64+4*i+3}], v13, s[8:11], s29 offen offset:{i*16}", "E")
    ACC, FR, NF = 16, 80, 8
    seq = [(st, ks, db) for st in range(5) for ks in range(8) for db in range(4)]
    D = 6
    def rd(n):
        st, ks, db = seq[n]
        if ks == 0 and db == 0:
            a.wait_vm([("W", st), ("B", st)])
            a.e("s_barrier")
        f = FR + 4 * (n % NF)
        base = [6, 6, 7, 7, 8][st]
        off = (st % 2) * 32768 + ks * 4096 + db * 256
        a.ds(f"ds_read_b64_tr_b16 v[{f}:{f+1}], v{base} offset:{off}", ("F", n))
        a.ds(f"ds_read_b64_tr_b16 v[{f+2}:{f+3}], v{base} offset:{off+2048}", ("F", n))
    for n in range(D): rd(n)
    for n, (st, ks, db) in enumerate(seq):
        if n % 32 == 0: stamp(a, 1 + n // 32)
        if n + D < len(seq): rd(n + D)
        a.wait_lg(("F", n))
        f = FR + 4 * (n % NF)
        s = st * 8 + ks
        c = "0" if s == 0 else f"v[{ACC+16*db}:{ACC+16*db+15}]"
        a.e(f"v_mfma_f32_32x32x16_bf16 v[{ACC+16*db}:{ACC+16*db+15}], v[{f}:{f+3}], a[{4*s}:{4*s+3}], {c}")
    stamp(a, 6)
    a.wait_vm0()
    a.nop(12)
    T = 80
    if kind == "s4":
        a.e(f"v_mov_b32 v12, {fx(GC2)}")
        for g in range(0, 64, 8):
            for l in interleave([gelu_ops(ACC + g + i, T + i, 12) for i in range(8)]): a.e(l)
        for i in range(32):
            a.e(f"v_cvt_pk_bf16_f32 v{ACC+i}, v{ACC+2*i}, v{ACC+2*i+1}")
        a.e("v_and_b32 v13, 31, v2")
        a.e("s_lshl_b32 s32, s27, 5")
        a.e("v_add_u32 v13, s32, v13")
        a.e("s_lshl_b32 s33, s26, 3")
        for j in range(8):
            a.e(f"s_add_u32 s34, s33, {j}")
            a.e("s_mov_b32 s35, 1")
            a.e("s_cmp_ge_u32 s34, 10")
            a.e("s_cselect_b32 s35, -1, s35")
            a.e("s_cmp_ge_u32 s34, 20")
            a.e("s_cselect_b32 s35, 2, s35")
            a.e("s_cmp_ge_u32 s34, 30")
            a.e("s_cselect_b32 s35, -2, s35")
            a.e("v_add_u32 v14, s35, v13")
            a.e("v_cmp_gt_u32 vcc, 0x800, v14")
            a.e("v_and_b32 v14, 0x7ff, v14")
            a.e("v_lshrrev_b32 v15, 5, v14")
            a.e("v_mul_u32_u24 v15, 0xa000, v15")
            a.e("v_and_b32 v14, 31, v14")
            a.e("v_lshl_add_u32 v14, v14, 4, v15")
            a.e(f"v_lshl_add_u32 v{T+j}, v9, 9, v14")
            for i in range(4):
                a.e(f"v_cndmask_b32 v{ACC+4*j+i}, 0, v{ACC+4*j+i}, vcc")
            a.e("s_lshl_b32 s34, s34, 10")
            a.e(f"s_add_u32 s34, s34, {WS_HS}")
            a.e(f"buffer_store_dwordx4 v[{ACC+4*j}:{ACC+4*j+3}], v{T+j}, s[8:11], s34 offen")
    if kind == "s5":
        a.e("v_mov_b32 v14, 0xffff0000")
        a.e("v_mov_b32 v12, 0")
        a.e("v_mov_b32 v13, 0")
        for i in range(32):
            a.e(f"v_lshlrev_b32 v{T}, 16, v{EX+i}")
            a.e(f"v_and_b32 v{T+1}, v14, v{EX+i}")
            a.e(f"v_add_f32 v{ACC+2*i}, v{ACC+2*i}, v{T}")
            a.e(f"v_add_f32 v{ACC+2*i+1}, v{ACC+2*i+1}, v{T+1}")
            a.e(f"v_add_f32 v12, v12, v{ACC+2*i}")
            a.e(f"v_fmac_f32 v13, v{ACC+2*i}, v{ACC+2*i}")
            a.e(f"v_add_f32 v12, v12, v{ACC+2*i+1}")
            a.e(f"v_fmac_f32 v13, v{ACC+2*i+1}, v{ACC+2*i+1}")
            a.e(f"v_cvt_pk_bf16_f32 v{EX+i}, v{ACC+2*i}, v{ACC+2*i+1}")
        for i in range(8):
            if i == 4: a.e("s_add_u32 s34, s34, 4096")
            a.e(f"buffer_store_dwordx4 v[{EX+4*i}:{EX+4*i+3}], v11, s[8:11], s34 offen offset:{(i%4)*1024}")
        a.e("v_and_b32 v15, 31, v2")
        a.e("v_mul_u32_u24 v15, 80, v15")
        a.e("v_lshl_add_u32 v15, v9, 3, v15")
        a.e(f"s_mul_i32 s29, s27, {32*80}")
        a.e("s_lshl_b32 s32, s26, 4")
        a.e("s_add_u32 s29, s29, s32")
        a.e(f"s_add_u32 s29, s29, {WS_ST1}")
        a.e(f"buffer_store_dwordx2 v[12:13], v15, s[8:11], s29 offen")
    if kind == "s6":
        S = EX + 64
        for i in range(1, 10):
            a.e(f"v_add_f32 v{S}, v{S}, v{S+2*i}")
            a.e(f"v_add_f32 v{S+1}, v{S+1}, v{S+2*i+1}")
        a.e(f"v_mul_f32 v{S}, {fx(1/640)}, v{S}")
        a.e(f"v_mul_f32 v{S+1}, {fx(1/640)}, v{S+1}")
        a.e(f"v_fma_f32 v{S+1}, -v{S}, v{S}, v{S+1}")
        a.e(f"v_max_f32 v{S+1}, 0, v{S+1}")
        a.e(f"v_add_f32 v{S+1}, {fx(1e-5)}, v{S+1}")
        a.e(f"v_rsq_f32 v{S+1}, v{S+1}")
        a.e(f"v_mov_b32 v12, {fx(GC2)}")
        for i in range(64):
            a.e(f"v_fma_f32 v{ACC+i}, -v{S}, v{EX+i}, v{ACC+i}")
            a.e(f"v_mul_f32 v{ACC+i}, v{ACC+i}, v{S+1}")
        for g in range(0, 64, 8):
            for l in interleave([gelu_ops(ACC + g + i, T + i, 12) for i in range(8)]): a.e(l)
        for i in range(32):
            a.e(f"v_cvt_pk_bf16_f32 v{ACC+i}, v{ACC+2*i}, v{ACC+2*i+1}")
        a.e("v_and_b32 v13, 15, v2")
        a.e("v_lshlrev_b32 v13, 4, v13")
        a.e("v_lshl_add_u32 v13, v10, 10, v13")
        a.e("v_lshl_add_u32 v13, v9, 8, v13")
        a.e("s_lshr_b32 s32, s27, 1")
        a.e("s_mul_i32 s32, s32, 54")
        a.e("s_lshl_b32 s33, s26, 2")
        a.e("s_add_u32 s32, s32, s33")
        a.e("s_lshl_b32 s32, s32, 12")
        a.e("s_and_b32 s33, s27, 1")
        a.e("s_lshl_b32 s33, s33, 11")
        a.e("s_add_u32 s32, s32, s33")
        a.e(f"s_add_u32 s32, s32, {WS_H3}")
        for db in range(4):
            if db == 2:
                a.e("s_cmp_eq_u32 s26, 13")
                a.e(f"s_cbranch_scc1 L{P}_end")
            for rh in range(2):
                r = ACC + 8 * db + 4 * rh
                a.e(f"buffer_store_dwordx4 v[{r}:{r+3}], v13, s[8:11], s32 offen offset:{rh*512}")
            a.e("s_add_u32 s32, s32, 4096")
    stamp_store(a, {"s4":2,"s5":3,"s6":4}[kind], vb=100)
    a.label(f"L{P}_end")
    a.e("s_endpgm")
    return Kern(f"{kind}_kernel", grid, 256, 163840, a.text(), 200 + 160, 200, 100)
```

```python
from common import *

def spin_wait(a, name, vreg, voff, srd, soff, target, barrier=False, cnt="s62"):
    a.e(f"v_readfirstlane_b32 s63, v{vreg}")
    a.e(f"s_cmp_ge_u32 s63, {target}")
    a.e(f"s_cbranch_scc1 {name}_ok")
    a.e(f"s_mov_b32 {cnt}, 20000")
    a.label(f"{name}_sp")
    if barrier: a.e("s_barrier")
    a.e("s_sleep 4")
    a.e(f"buffer_load_dword v{vreg}, v{voff}, s[{srd}:{srd+3}], {soff} offen sc1")
    a.e("s_waitcnt vmcnt(0)")
    a.e(f"v_readfirstlane_b32 s63, v{vreg}")
    a.e(f"s_cmp_ge_u32 s63, {target}")
    a.e(f"s_cbranch_scc1 {name}_ok")
    a.e(f"s_sub_u32 {cnt}, {cnt}, 1")
    a.e(f"s_cmp_lg_u32 {cnt}, 0")
    a.e(f"s_cbranch_scc1 {name}_sp")
    a.label(f"{name}_ok")

def l1_kernel():
    a = Asm()
    a.auto = True
    grid = 256
    SC = " sc1"
    stamp_init(a)
    load_srds(a, [(20, "x"), (4, "ckv"), (8, "ws"), (12, "wuk"), (16, "wuv"), (36, "dbg"), (40, "w1"), (44, "wo"), (48, "w4"), (52, "w3")])
    a.e("v_lshrrev_b32 v6, 6, v0")
    a.e("v_and_b32 v7, 63, v0")
    a.e("v_readfirstlane_b32 s24, v6")
    a.e(f"s_cmp_ge_u32 s2, {grid}")
    a.e("s_cbranch_scc1 Ll1_end")
    a.e("v_and_b32 v56, 7, v7")
    a.e("v_bfe_u32 v57, v7, 3, 2")
    a.e("v_lshrrev_b32 v58, 5, v7")
    a.e("v_mul_u32_u24 v59, 1280, v56")
    a.e("v_lshl_add_u32 v59, v57, 5, v59")
    a.e("v_lshl_add_u32 v59, v58, 4, v59")
    a.e("s_mul_i32 s27, s2, 10240")
    a.e("s_lshl_b32 s28, s24, 8")
    a.e("s_add_u32 s27, s27, s28")
    a.e("s_cmp_lt_u32 s24, 5")
    a.e("s_cselect_b64 s[56:57], -1, 0")
    a.e("s_and_b32 s25, s2, 7")
    a.e("s_lshl_b32 s25, s25, 2")
    a.e("s_bfe_u32 s28, s2, 0x20003")
    a.e("s_add_u32 s25, s25, s28")
    a.e("s_lshr_b32 s26, s2, 5")
    TMP = 96
    a.e(f"v_lshrrev_b32 v6, 3, v7")
    a.e(f"v_and_b32 v5, 7, v7")
    a.e(f"v_lshrrev_b32 v4, 1, v6")
    a.e(f"v_xor_b32 v5, v5, v4")
    a.e(f"v_lshlrev_b32 v6, 10, v6")
    a.e(f"v_lshl_add_u32 v{TMP}, v5, 4, v6")
    a.e(f"v_xor_b32 v{TMP+1}, 64, v{TMP}")
    a.e("s_waitcnt lgkmcnt(0)")
    a.e("s_mov_b64 exec, s[56:57]")
    a.vmem("buffer_load_dwordx4 v[32:35], v59, s[20:23], s27 offen", "LX")
    a.vmem("buffer_load_dwordx4 v[36:39], v59, s[20:23], s27 offen offset:128", "LX")
    a.e("s_mov_b64 exec, -1")
    a.e("s_lshl_b32 s28, s26, 18")
    a.e("s_lshl_b32 s27, s24, 15")
    a.e("s_add_u32 s28, s28, s27")
    a.e("s_lshl_b32 s29, s24, 12")
    def dmaA(c, slot, i):
        a.e(f"s_add_u32 m0, s29, {slot*32768 + i*1024}")
        a.e(f"s_add_u32 s33, s28, {i*8192 + c*128}")
        a.vmem(f"buffer_load_dwordx4 v{TMP+(i&1)}, s[4:7], s33 offen lds", ("A", c))
    def dmaW(j, slot, i):
        a.e(f"s_add_u32 m0, s29, {slot*32768 + i*1024}")
        if j < 4:
            a.e(f"s_add_u32 s33, s30, {(j*128 + 4*i)*8192}")
            a.vmem(f"buffer_load_dwordx4 v1, s[12:15], s33 offen lds", ("W", j))
        else:
            ch, kk = (j - 4) >> 1, (j - 4) & 1
            a.e(f"s_add_u32 s33, s30, {(kk*256 + 4*i)*8192 + ch*128}")
            a.vmem(f"buffer_load_dwordx4 v2, s[16:19], s33 offen lds", ("W", j))
    for i in range(4): dmaA(0, 3, i)
    a.e("v_bfe_u32 v4, v7, 2, 2")
    a.e("v_and_b32 v5, 3, v7")
    a.e("v_lshlrev_b32 v6, 13, v4")
    a.e("v_lshl_add_u32 v6, v5, 4, v6")
    a.e("v_lshrrev_b32 v3, 4, v7")
    a.e("v_lshl_add_u32 v1, v3, 6, v6")
    a.e("v_bfe_u32 v3, v7, 4, 1")
    a.e("v_lshl_add_u32 v2, v3, 6, v6")
    a.e("v_lshrrev_b32 v6, 5, v7")
    a.e("v_lshl_add_u32 v2, v6, 20, v2")
    a.e("s_lshl_b32 s30, s24, 17")
    a.e("s_lshl_b32 s27, s25, 8")
    a.e("s_add_u32 s30, s30, s27")
    for i in range(4): dmaW(0, 2, i)
    for i in range(4): dmaA(1, 0, i)
    for i in range(4): dmaA(2, 1, i)
    a.e("v_lshlrev_b32 v3, 5, v3")
    a.e("v_lshl_add_u32 v3, v6, 11, v3")
    a.e("v_lshl_add_u32 v3, v4, 6, v3")
    a.e("v_lshl_add_u32 v3, v5, 3, v3")
    AR = TMP + 2
    a.e(f"v_and_b32 v4, 31, v7")
    a.e(f"v_bfe_u32 v5, v7, 1, 3")
    a.e(f"v_xor_b32 v5, v5, v6")
    a.e(f"v_lshlrev_b32 v5, 4, v5")
    a.e(f"v_lshl_add_u32 v5, v4, 7, v5")
    a.e(f"v_add_u32 v5, s29, v5")
    for k4 in range(4):
        a.e(f"v_xor_b32 v{AR+k4}, {k4*32}, v5")
        a.e(f"v_add_u32 v{AR+4+k4}, 0x18000, v{AR+k4}")
    a.e("v_add_u32 v4, 0x10000, v3")
    a.e("v_add_u32 v5, 0x20000, v3")
    a.e("v_lshlrev_b32 v0, 4, v7")
    a.e("s_lshl_b32 s34, s25, 20")
    a.e("s_lshl_b32 s27, s26, 17")
    a.e("s_add_u32 s34, s34, s27")
    a.e("s_lshr_b32 s27, s24, 1")
    a.e("s_lshl_b32 s27, s27, 15")
    a.e("s_add_u32 s34, s34, s27")
    a.e("s_and_b32 s27, s24, 1")
    a.e("s_lshl_b32 s35, s27, 11")
    a.e("s_add_u32 s35, s35, s34")
    a.e("s_add_u32 s35, s35, 16384")
    a.e("s_lshl_b32 s27, s27, 13")
    a.e("s_add_u32 s34, s34, s27")
    a.e("v_lshrrev_b32 v60, 3, v7")
    a.e("v_lshlrev_b32 v60, 12, v60")
    a.e("v_lshl_add_u32 v60, v56, 6, v60")
    a.e("s_lshl_b32 s27, s24, 3")
    a.e("s_add_u32 s27, s27, 0x20000")
    a.e("v_add_u32 v60, s27, v60")
    a.e("s_add_u32 s27, s29, 0x20000")
    a.e("v_lshlrev_b32 v61, 6, v56")
    a.e("v_add_u32 v61, s27, v61")
    a.e("v_lshlrev_b32 v62, 10, v57")
    a.e("v_lshl_add_u32 v62, v58, 9, v62")
    a.e("v_lshl_add_u32 v62, v56, 4, v62")
    a.e("s_and_b32 s27, s2, 3")
    a.e("s_lshl_b32 s27, s27, 7")
    a.e("v_add_u32 v62, s27, v62")
    a.e("s_lshr_b32 s27, s2, 2")
    a.e("s_mul_i32 s27, s27, 40960")
    a.e("s_lshl_b32 s31, s24, 13")
    a.e("s_add_u32 s27, s27, s31")
    a.e("s_mov_b32 s58, 0x3f803f80")
    a.e("v_mov_b32 v63, 0xffff0000")
    a.e("s_mov_b64 exec, s[56:57]")
    stamp(a, 9)
    a.wait_vm("LX")
    stamp(a, 10)
    def ln(rnd, dst, wsoff):
        S, Q, T = 64, 65, 66
        for i in range(8):
            a.e(f"v_dot2_f32_bf16 v{S}, v{32+i}, s58, {'0' if i==0 else 'v%d'%S}")
            a.e(f"v_dot2_f32_bf16 v{Q}, v{32+i}, v{32+i}, {'0' if i==0 else 'v%d'%Q}")
        for i in range(4):
            a.e(f"v_lshlrev_b32 v{40+2*i}, 16, v{32+i}")
            a.e(f"v_and_b32 v{41+2*i}, v63, v{32+i}")
        a.e(f"v_add_f32_dpp v{S}, v{S}, v{S} row_ror:8 row_mask:0xf bank_mask:0xf")
        a.e(f"v_add_f32_dpp v{Q}, v{Q}, v{Q} row_ror:8 row_mask:0xf bank_mask:0xf")
        for pl in ("16", "32"):
            a.e(f"v_mov_b32 v{T}, v{S}")
            a.e(f"v_mov_b32 v{T+1}, v{Q}")
            a.e(f"v_permlane{pl}_swap_b32 v{T}, v{S}")
            a.e(f"v_permlane{pl}_swap_b32 v{T+1}, v{Q}")
            a.e(f"v_add_f32 v{S}, v{S}, v{T}")
            a.e(f"v_add_f32 v{Q}, v{Q}, v{T+1}")
        a.e(f"ds_write_b64 v60, v[{S}:{Q}] offset:{rnd*512}")
        for i in range(4, 8):
            a.e(f"v_lshlrev_b32 v{40+2*i}, 16, v{32+i}")
            a.e(f"v_and_b32 v{41+2*i}, v63, v{32+i}")
        a.e("s_waitcnt lgkmcnt(0)")
        a.e("s_barrier")
        a.e(f"ds_read_b128 v[68:71], v61 offset:{rnd*512}")
        a.e(f"ds_read_b128 v[72:75], v61 offset:{rnd*512+16}")
        a.e(f"ds_read_b64 v[76:77], v61 offset:{rnd*512+32}")
        a.e("s_waitcnt lgkmcnt(0)")
        for k in range(2):
            a.e(f"v_add_f32 v{68+k}, v{68+k}, v{70+k}")
            a.e(f"v_add_f32 v{72+k}, v{72+k}, v{74+k}")
        for k in range(2):
            a.e(f"v_add_f32 v{68+k}, v{68+k}, v{72+k}")
            a.e(f"v_add_f32 v{68+k}, v{68+k}, v{76+k}")
        a.e(f"v_mul_f32 v68, {fx(1/640)}, v68")
        a.e(f"v_mul_f32 v69, {fx(1/640)}, v69")
        a.e("v_fma_f32 v69, -v68, v68, v69")
        a.e("v_max_f32 v69, 0, v69")
        a.e(f"v_add_f32 v69, {fx(1e-5)}, v69")
        a.e("v_rsq_f32 v69, v69")
        a.e("v_mul_f32 v68, v68, v69")
        for i in range(16): a.e(f"v_fma_f32 v{40+i}, v{40+i}, v69, -v68")
        for i in range(8):
            a.e(f"v_cvt_pk_bf16_f32 v{dst+i}, v{40+2*i}, v{41+2*i}")
            if rnd == 0: a.e(f"v_mov_b32 v{32+i}, v{dst+i}")
        for h in range(2):
            a.e(f"v_permlane32_swap_b32 v{dst+4*h}, v{dst+4*h+2}")
            a.e(f"v_permlane32_swap_b32 v{dst+4*h+1}, v{dst+4*h+3}")
        for h in range(2):
            a.e(f"s_add_u32 s31, s27, {wsoff + 4096*h}")
            a.vmem(f"buffer_store_dwordx4 v[{dst+4*h}:{dst+4*h+3}], v62, s[8:11], s31 offen{SC}", "LS")
    ln(0, 80, WS_XN)
    ln(1, 88, WS_XN2)
    a.e("s_mov_b64 exec, -1")
    stamp(a, 11)
    for i in range(4): dmaA(3, 4, i)
    def rdA(c, slot, k4):
        s = 4 * c + k4
        if slot < 3: r, off = AR + k4, slot * 32768
        else: r, off = AR + 4 + k4, (slot - 3) * 32768
        a.ds(f"ds_read_b128 a[{4*s}:{4*s+3}], v{r} offset:{off}", ("RA", c))
    stamp(a, 5)
    a.wait_vm(("A", 0))
    for k4 in range(4): rdA(0, 3, k4)
    a.wait_vm(("A", 1))
    stamp(a, 6)
    for k4 in range(4): rdA(1, 0, k4)
    a.wait_lg0()
    for i in range(4): dmaW(1, 3, i)
    stamp(a, 7)
    for i in range(4): dmaA(4, 0, i)
    stamp(a, 8)
    wslot = {0: 2, 1: 3, 2: 4, 3: 0, 4: 1, 5: 2, 6: 3, 7: 4}
    FR, NF, D = 8, 6, 5
    KACC, V1, V2 = 32, 96, 32
    seq = []
    for j in range(4):
        for ks in range(8):
            for db in range(4): seq.append((j, ks, db))
    for j in range(4, 8):
        for ks in range(16):
            for db in range(2): seq.append((j, ks, db))
    NG = len(seq)
    def rd(n):
        f = FR + 4 * (n % NF)
        if n >= NG:
            ks = n - NG
            if ks == 0:
                a.wait_vm("W1")
                a.e("s_barrier")
            sl = ks // 16
            off = (sl % 2) * 32768 + (ks % 8) * 4096 + ((ks % 16) // 8) * 512
            base = 6 + sl // 2
            a.ds(f"ds_read_b64_tr_b16 v[{f}:{f+1}], v{base} offset:{off}", ("F", n))
            a.ds(f"ds_read_b64_tr_b16 v[{f+2}:{f+3}], v{base} offset:{off+2048}", ("F", n))
            return
        j, ks, db = seq[n]
        if ks == 0 and db == 0:
            a.wait_vm(("W", j))
            a.e("s_barrier")
            if j == 1:
                a.e("s_cmp_lg_u32 s24, 0")
                a.e("s_cbranch_scc1 Ll1_nf")
                a.e("s_lshr_b32 s31, s2, 4")
                a.e("s_lshl_b32 s31, s31, 2")
                a.e("v_mov_b32 v106, 1")
                a.e("v_mov_b32 v107, 0")
                a.e("s_mov_b64 exec, 1")
                a.e("buffer_atomic_add v106, v107, s[36:39], s31 offen sc1")
                a.e("s_mov_b64 exec, -1")
                a.label("Ll1_nf")
        sl = wslot[j]
        base = [3, 3, 4, 4, 5][sl]
        off = (sl % 2) * 32768 + (ks % 8) * 4096 + db * 256 + (ks // 8) * 512
        a.ds(f"ds_read_b64_tr_b16 v[{f}:{f+1}], v{base} offset:{off}", ("F", n))
        a.ds(f"ds_read_b64_tr_b16 v[{f+2}:{f+3}], v{base} offset:{off+1024}", ("F", n))
    ev = {}
    def at(n, fn, e=None): (ev if e is None else e).setdefault(n, []).append(fn)
    def sched_rdA(n0, cs, slots):
        n = n0
        for c, sl in zip(cs, slots):
            at(n, (lambda c=c: a.wait_vm(("A", c))))
            for k4 in range(4):
                at(n + k4 // 2, (lambda c=c, sl=sl, k4=k4: rdA(c, sl, k4)))
            n += 2
    def sched_dma(n0, fn, idx, slot, dep=None):
        for i in range(4):
            if dep is not None and i == 0: at(n0, (lambda dep=dep: a.wait_lg(dep)))
            at(n0 + i, (lambda i=i: fn(idx, slot, i)))
    sched_rdA(1, [2], [1])
    sched_dma(7, dmaA, 5, 1, [("RA", 2)])
    sched_rdA(12, [3], [4])
    sched_dma(17, dmaW, 2, 4, [("RA", 3)])
    sched_rdA(24, [4], [0])
    sched_dma(30, dmaA, 6, 0, [("RA", 4)])
    sched_rdA(38, [5], [1])
    sched_dma(44, dmaA, 7, 1, [("RA", 5)])
    sched_rdA(55, [6], [0])
    sched_dma(61, dmaW, 3, 0, [("RA", 6)])
    sched_dma(65, dmaW, 5, 2)
    sched_rdA(70, [7], [1])
    sched_dma(76, dmaW, 4, 1, [("RA", 7)])
    sched_dma(94, dmaW, 6, 3)
    sched_dma(110, dmaW, 7, 4)
    def pack(n0, acc, ndb, store):
        n = n0
        for db in range(ndb):
            for i in range(8):
                r = acc + 16 * db
                at(n + i // 2, (lambda r=r, i=i: a.e(f"v_cvt_pk_bf16_f32 v{r+i}, v{r+2*i}, v{r+2*i+1}")))
            at(n + 4, (lambda db=db: store(db, 0)))
            at(n + 5, (lambda db=db: store(db, 1)))
            n += 6
    def stK(db, rh):
        r = KACC + 16 * db + 4 * rh
        ds_ = 2 * db + rh
        if ds_ == 4: a.e("s_add_u32 s34, s34, 4096")
        a.vmem(f"buffer_store_dwordx4 v[{r}:{r+3}], v0, s[8:11], s34 offen offset:{(ds_%4)*1024}{SC}", "ST")
    def stV(acc):
        def f(db, rh):
            r = acc + 16 * db + 4 * rh
            a.vmem(f"buffer_store_dwordx4 v[{r}:{r+3}], v0, s[8:11], s35 offen offset:{rh*1024}{SC}", "ST")
            if rh == 1: a.e("s_add_u32 s35, s35, 4096")
        return f
    pack(131, KACC, 4, stK)
    pack(195, V1, 2, stV(V1))
    pack(258, V2, 2, stV(V2))
    def xreg(s):
        if s < 4: return f"v[{80+4*s}:{83+4*s}]"
        if s < 20: return f"a[{4*(s-4)}:{4*(s-4)+3}]"
        if s < 28: return f"v[{96+4*(s-20)}:{99+4*(s-20)}]"
        return f"a[{64+4*(s-28)}:{67+4*(s-28)}]"
    def run(n0, n1, nmf, ex):
        for n in range(n0, n1):
            for fn in ev.get(n, []): fn()
            for fn in ex.get(n, []): fn()
            if n >= nmf: continue
            if n % 32 == 0 and n <= 96: stamp(a, 1 + n // 32)
            if n + D < nmf: rd(n + D)
            a.wait_lg(("F", n))
            f = FR + 4 * (n % NF)
            if n >= NG:
                s = n - NG
                a.wait_vm(("X", s))
                a.e(f"v_mfma_f32_32x32x16_bf16 v[64:79], v[{f}:{f+3}], {xreg(s)}, {'0' if s==0 else 'v[64:79]'}")
                continue
            j, ks, db = seq[n]
            if j < 4:
                s = j * 8 + ks
                if ks == 0 and db == 0: a.wait_lg([("RA", 2 * j), ("RA", 2 * j + 1)])
                d = f"v[{KACC+16*db}:{KACC+16*db+15}]"
                c = "0" if s == 0 else d
                a.e(f"v_mfma_f32_32x32x16_bf16 {d}, v[{f}:{f+3}], a[{4*s}:{4*s+3}], {c}")
            else:
                ch, kk = (j - 4) >> 1, (j - 4) & 1
                s = kk * 16 + ks
                acc = V1 if ch == 0 else V2
                d = f"v[{acc+16*db}:{acc+16*db+15}]"
                c = "0" if s == 0 else d
                a.e(f"v_mfma_f32_32x32x16_bf16 {d}, a[{4*s}:{4*s+3}], v[{f}:{f+3}], {c}")
    def spread(ex, n0, ops, per=2):
        for k, o in enumerate(ops):
            at(n0 + k // per, (lambda o=o: a.e(o)), ex)
    for n in range(D): rd(n)
    NB = 116
    run(0, NB, NG, {})
    a.e("s_cmp_ge_u32 s2, 160")
    a.e("s_cbranch_scc1 Ll1_pk")
    save = (list(a.vm), list(a.lg), list(a.hist))
    ex = {}
    spread(ex, NB, [
        "s_and_b32 s25, s2, 7", "s_lshr_b32 s26, s2, 3", "s_lshl_b32 s25, s25, 1",
        "s_sub_u32 s27, s26, 10", "s_add_u32 s28, s25, 1", "s_cmp_ge_u32 s26, 10\ns_cselect_b32 s25, s28, s25\ns_cselect_b32 s26, s27, s26",
        "s_lshl_b32 s59, s25, 2",
        "v_mov_b32 v6, 0",
        "v_bfe_u32 v1, v0, 6, 2",
        "v_mul_u32_u24 v1, 1280, v1",
        "v_and_b32 v7, 0x30, v0",
        "v_add_u32 v1, v1, v7",
        "v_bfe_u32 v7, v0, 8, 1",
        "v_lshl_add_u32 v1, v7, 6, v1",
        "v_lshrrev_b32 v7, 9, v0",
        f"v_mul_u32_u24 v7, {128*1280}, v7",
        "v_add_u32 v1, v1, v7",
        f"s_mul_i32 s30, s24, {16*1280}", "s_lshl_b32 s27, s26, 7", "s_add_u32 s30, s30, s27",
        "s_and_b32 s27, s24, 3", "s_add_u32 s27, s27, s59",
        "s_mul_i32 s60, s27, 40960", f"s_add_u32 s60, s60, {WS_XN2}",
        "s_lshl_b32 s61, s27, 5",
        "s_lshr_b32 s28, s24, 2",
        "s_lshl_b32 s27, s26, 1", "s_add_u32 s27, s27, s28",
        "s_mov_b32 s31, 1",
        "s_cmp_ge_u32 s27, 5\ns_cselect_b32 s31, -1, s31",
        "s_cmp_ge_u32 s27, 10\ns_cselect_b32 s31, 2, s31",
        "s_cmp_ge_u32 s27, 15\ns_cselect_b32 s31, -2, s31",
        "s_add_u32 s61, s61, s31",
        "s_lshl_b32 s32, s27, 11", f"s_add_u32 s32, s32, {WS_HS}",
        "s_lshl_b32 s28, s28, 8",
    ], 3)
    at(129, lambda: a.vmem("buffer_load_dword v7, v6, s[36:39], s59 offen sc1", "FL"), ex)
    def dmaW1(p, i):
        a.e(f"s_add_u32 m0, s29, {p*32768 + i*1024}")
        a.e(f"s_add_u32 s33, s30, {(p*256 + 4*i)*1280}")
        a.vmem(f"buffer_load_dwordx4 v1, s[40:43], s33 offen lds", "W1")
    for p in range(3):
        for i in range(4): at(133 + 32 * p + 2 * i, (lambda p=p, i=i: dmaW1(p, i)), ex)
    def poll():
        a.wait_vm("FL")
        spin_wait(a, "Ll1_w", 7, 6, 36, "s59", 16)
    at(159, poll, ex)
    def ldX(s):
        a.e(f"s_add_u32 s33, s60, {(s//4)*4096}")
        a.vmem(f"buffer_load_dwordx4 {xreg(s)}, v0, s[8:11], s33 offen offset:{(s%4)*1024} sc1", ("X", s))
    for s in range(40):
        n = 160 + s if s < 4 else 194 + 2 * (s - 4) if s < 20 else 209 + 2 * (s - 20) if s < 28 else 226 + 2 * (s - 28)
        at(n, (lambda s=s: ldX(s)), ex)
    spread(ex, 174, [
        "v_lshrrev_b32 v7, 9, v0",
        "v_lshlrev_b32 v6, 10, v7",
        "v_and_b32 v2, 0xc0, v0",
        "v_add_u32 v6, v6, v2",
        "v_bfe_u32 v2, v0, 8, 1",
        "v_lshl_add_u32 v6, v2, 5, v6",
        "v_bfe_u32 v2, v0, 4, 2",
        "v_lshl_add_u32 v6, v2, 3, v6",
        "v_add_u32 v6, s28, v6",
        "v_bfe_u32 v2, v0, 4, 5",
        "v_add_u32 v2, s61, v2",
        "v_cmp_gt_u32 vcc, 0x800, v2",
        "v_and_b32 v64, 31, v2",
        "v_bfe_u32 v2, v2, 5, 6",
        "v_mul_u32_u24 v2, 0xa000, v2",
        "v_lshl_add_u32 v2, v64, 4, v2",
        "v_lshl_add_u32 v2, v7, 9, v2",
        "v_add_u32 v7, 0x10000, v6",
    ], 1)
    run(NB, NG + 40, NG + 40, ex)
    stamp(a, 12)
    a.e(f"v_mov_b32 v32, {fx(GC2)}")
    for l in interleave([gelu_ops(64 + i, 33 + i, 32) for i in range(16)]): a.e(l)
    for i in range(8):
        a.e(f"v_cvt_pk_bf16_f32 v{64+i}, v{64+2*i}, v{65+2*i}")
    for i in range(8):
        a.e(f"v_cndmask_b32 v{64+i}, 0, v{64+i}, vcc")
    for rh in range(2):
        a.e(f"buffer_store_dwordx4 v[{64+4*rh}:{67+4*rh}], v2, s[8:11], s32 offen offset:{rh*1024}{SC}")
    stamp_store(a, 1, vb=96)
    a.e("s_endpgm")
    a.label("Ll1_pk")
    a.vm, a.lg, a.hist = list(save[0]), list(save[1]), list(save[2])
    ex = {}
    spread(ex, NB, [
        "s_sub_u32 s25, s2, 160",
        "s_sub_u32 s26, s25, 42",
        "s_cmp_ge_u32 s25, 42\ns_cselect_b32 s54, s54, 0\ns_cselect_b64 s[56:57], -1, 0\ns_cselect_b32 s26, s26, 0",
        "v_lshrrev_b32 v1, 6, v0",
        "v_mul_u32_u24 v1, 3456, v1",
        "v_and_b32 v7, 0x30, v0",
        "v_add_u32 v1, v1, v7",
        f"s_mul_i32 s30, s24, {80*3456}", "s_lshl_b32 s27, s26, 6", "s_add_u32 s30, s30, s27",
        "s_mul_i32 s59, s24, 5120",
        "s_sub_u32 s27, s25, 64",
        f"s_cmp_ge_u32 s25, 64\ns_cselect_b64 s[44:45], s[48:49], s[44:45]\ns_cselect_b32 s46, s50, s46\ns_cselect_b32 s27, s27, s25\ns_cselect_b32 s28, 54, 128\ns_cselect_b32 s61, {WS_W4P-WS_WOP}, 0",
        "s_mul_i32 s60, s27, 81920", "s_add_u32 s60, s60, s59",
        "s_mul_i32 s28, s28, s24", "s_lshl_b32 s27, s27, 1", "s_add_u32 s28, s28, s27", "s_mul_i32 s28, s28, 5120",
        "s_add_u32 s61, s61, s28", f"s_add_u32 s61, s61, {WS_WOP}",
        "s_mul_i32 s27, s26, 171", "s_lshr_b32 s27, s27, 9",
        "s_mul_i32 s28, s27, 117", "s_add_u32 s28, s28, s26",
        "s_mul_i32 s27, s24, 15", "s_add_u32 s28, s28, s27", "s_lshl_b32 s28, s28, 10", f"s_add_u32 s32, s28, {WS_W3P}",
        "v_lshrrev_b32 v7, 9, v0", "v_lshlrev_b32 v6, 8, v7", "v_and_b32 v2, 0xc0, v0", "v_add_u32 v6, v6, v2",
        "v_bfe_u32 v2, v0, 8, 1", "v_lshl_add_u32 v6, v2, 5, v6", "v_bfe_u32 v2, v0, 4, 2", "v_lshl_add_u32 v6, v2, 3, v6",
        "v_add_u32 v6, s59, v6",
        "v_lshlrev_b32 v7, 4, v7", "v_bfe_u32 v2, v0, 8, 1", "v_lshl_add_u32 v7, v2, 2, v7", "v_bfe_u32 v2, v0, 6, 2", "v_add_u32 v7, v7, v2",
        "v_mul_u32_u24 v7, 1280, v7", "v_bfe_u32 v2, v0, 4, 2", "v_lshl_add_u32 v7, v2, 3, v7",
        "s_mul_i32 s27, s24, 160", "s_add_u32 s27, s27, 40960", "v_add_u32 v7, s27, v7",
    ], 2)
    def dB(i):
        a.e(f"s_add_u32 m0, s59, {i*1024}")
        a.e(f"s_add_u32 s33, s30, {i*16*3456}")
        a.vmem(f"buffer_load_dwordx4 v1, s[52:55], s33 offen lds", "PB")
    def dA(u, i):
        a.e(f"s_add_u32 m0, s59, {40960*(u+1) + i*1024}")
        a.e(f"s_add_u32 s33, s60, {40960*u + i*1024}")
        a.vmem(f"buffer_load_dwordx4 v0, s[44:47], s33 offen lds", "PA")
    for i in range(5):
        at(165 + 2 * i, (lambda i=i: dB(i)), ex)
        at(197 + 2 * i + (i > 0) * 8, (lambda i=i: dA(0, i)), ex)
        at(229 + 2 * i, (lambda i=i: dA(1, i)), ex)
    at(216, lambda: a.wait_vm("PB"), ex)
    for i in range(5):
        at(216 + i, (lambda i=i: (a.ds(f"ds_read_b64_tr_b16 v[{64+4*i}:{65+4*i}], v6 offset:{i*1024}", "RB"),
                                  a.ds(f"ds_read_b64_tr_b16 v[{66+4*i}:{67+4*i}], v6 offset:{i*1024+512}", "RB"))), ex)
    at(226, lambda: a.wait_lg("RB"), ex)
    def stB(i):
        a.e("s_mov_b64 exec, s[56:57]")
        a.vmem(f"buffer_store_dwordx4 v[{64+4*i}:{67+4*i}], v0, s[8:11], s32 offen{SC}", "ST")
        a.e("s_mov_b64 exec, -1")
        a.e("s_add_u32 s32, s32, 3072")
    for i in range(5): at(226 + 2 * i, (lambda i=i: stB(i)), ex)
    spread(ex, 238, [f"v_dot2_f32_bf16 v84, v{64+i}, s58, {'0' if i==0 else 'v84'}" for i in range(20)] +
           ["v_lshrrev_b32 v86, 2, v0", "v_add_u32 v86, s59, v86"], 1)
    at(262, lambda: a.ds("ds_write_b32 v86, v84", "WB"), ex)
    run(NB, NG + 16, NG, ex)
    a.wait_vm("PA")
    a.wait_lg0()
    a.e("s_barrier")
    stamp(a, 12)
    a.e("s_cmp_ge_u32 s25, 91")
    a.e("s_cbranch_scc1 Ll1_pk2")
    for u in range(2):
        for i in range(5):
            r = 64 + 20 * u + 4 * i
            a.e(f"ds_read_b64_tr_b16 v[{r}:{r+1}], v7 offset:{40960*u + 32*i}")
            a.e(f"ds_read_b64_tr_b16 v[{r+2}:{r+3}], v7 offset:{40960*u + 32*i + 10240}")
        if u == 0: a.e("s_waitcnt lgkmcnt(4)")
    for k in range(10):
        r = 64 + 4 * k
        if k == 0: a.e("s_waitcnt lgkmcnt(10)")
        if k == 5: a.e("s_waitcnt lgkmcnt(0)")
        if k % 4 == 0 and k: a.e("s_add_u32 s61, s61, 4096")
        a.e(f"buffer_store_dwordx4 v[{r}:{r+3}], v0, s[8:11], s61 offen offset:{(k%4)*1024}{SC}")
    a.label("Ll1_pk2")
    a.hist = []
    a.e("s_cmp_lg_u32 s24, 7")
    a.e("s_cbranch_scc1 Ll1_pk3")
    a.e("s_cmp_lt_u32 s25, 42")
    a.e("s_cbranch_scc1 Ll1_pk3")
    a.e("v_lshrrev_b32 v6, 2, v0")
    for w in range(8): a.e(f"ds_read_b32 v{8+w}, v6 offset:{5120*w}")
    a.e("s_waitcnt lgkmcnt(0)")
    for w in range(1, 8): a.e(f"v_add_f32 v8, v8, v{8+w}")
    a.e("v_mov_b32 v9, v8")
    a.e("v_permlane32_swap_b32 v9, v8")
    a.e("v_add_f32 v8, v8, v9")
    a.e("s_lshl_b32 s27, s26, 7")
    a.e(f"s_add_u32 s27, s27, {WS_CS3}")
    a.e("s_mov_b32 exec_hi, 0")
    a.e(f"buffer_store_dword v8, v6, s[8:11], s27 offen{SC}")
    a.e("s_mov_b64 exec, -1")
    a.label("Ll1_pk3")
    stamp_store(a, 1, vb=108)
    a.label("Ll1_end")
    a.e("s_endpgm")
    print("l1 auto nops:", a.nnop)
    return Kern("l1_kernel", grid, 512, 163840, a.text(), 256, 128, 100)
```

```python
from common import *

def l3_kernel():
    a = Asm()
    grid = 256
    stamp_init(a)
    load_srds(a, [(4, "x"), (8, "ws"), (12, "out")])
    a.e("v_lshrrev_b32 v1, 6, v0")
    a.e("v_and_b32 v2, 63, v0")
    a.e("v_readfirstlane_b32 s24, v1")
    a.e(f"s_cmp_ge_u32 s2, {grid}")
    a.e("s_cbranch_scc1 Ll3_end")
    a.e("s_bfe_u32 s25, s2, 0x20001")
    a.e("s_lshl_b32 s25, s25, 3")
    a.e("s_lshr_b32 s27, s2, 5")
    a.e("s_add_u32 s25, s25, s27")
    a.e("s_and_b32 s26, s2, 1")
    a.e("s_lshl_b32 s26, s26, 2")
    a.e("s_bfe_u32 s27, s2, 0x20003")
    a.e("s_add_u32 s26, s26, s27")
    a.e("v_lshlrev_b32 v3, 4, v2")
    a.e("v_add_u32 v4, 0x1000, v3")
    a.e("s_mul_i32 s28, s24, 21")
    a.e("s_cmp_eq_u32 s24, 5")
    a.e("s_cselect_b32 s28, 106, s28")
    a.e("s_sub_u32 s27, s24, 6")
    a.e("s_mul_i32 s27, s27, 27")
    a.e("s_cmp_ge_u32 s24, 6")
    a.e("s_cselect_b32 s28, s27, s28")
    a.e("s_cselect_b32 s29, 54, 128")
    a.e(f"s_mov_b32 s30, {WS_CTX}")
    a.e(f"s_cselect_b32 s30, {WS_H3}, s30")
    a.e(f"s_mov_b32 s31, {WS_WOP}")
    a.e(f"s_cselect_b32 s31, {WS_W4P}, s31")
    a.e("s_mul_i32 s32, s25, s29")
    a.e("s_add_u32 s32, s32, s28")
    a.e("s_lshl_b32 s32, s32, 12")
    a.e("s_add_u32 s30, s30, s32")
    a.e("s_mul_i32 s32, s26, s29")
    a.e("s_add_u32 s32, s32, s28")
    a.e("s_mul_i32 s32, s32, 5120")
    a.e("s_add_u32 s31, s31, s32")
    a.e("v_and_b32 v5, 15, v2")
    a.e("v_lshrrev_b32 v6, 4, v2")
    a.e("v_mul_u32_u24 v7, 1280, v5")
    a.e("v_lshl_add_u32 v7, v6, 3, v7")
    a.e("v_lshlrev_b32 v8, 4, v5")
    a.e("v_and_b32 v9, 1, v6")
    a.e("v_lshl_add_u32 v8, v9, 9, v8")
    a.e("v_lshrrev_b32 v9, 1, v6")
    a.e("v_lshl_add_u32 v8, v9, 3, v8")
    a.e("s_and_b32 s33, s24, 3")
    a.e("s_lshr_b32 s34, s24, 2")
    a.e("s_lshl_b32 s35, s25, 2")
    a.e("s_add_u32 s35, s35, s33")
    a.e("s_mul_i32 s35, s35, 20480")
    a.e("s_mul_i32 s36, s26, 160")
    a.e("s_add_u32 s35, s35, s36")
    a.e("s_lshl_b32 s36, s34, 5")
    a.e("s_add_u32 s35, s35, s36")
    a.e("s_lshl_b32 s36, s25, 1")
    a.e("s_lshr_b32 s37, s33, 1")
    a.e("s_add_u32 s36, s36, s37")
    a.e("s_mul_i32 s36, s36, 40")
    a.e("s_mul_i32 s37, s26, 5")
    a.e("s_add_u32 s36, s36, s37")
    a.e("s_add_u32 s36, s36, s34")
    a.e("s_lshl_b32 s36, s36, 10")
    a.e("s_and_b32 s37, s33, 1")
    a.e("s_lshl_b32 s37, s37, 8")
    a.e("s_add_u32 s36, s36, s37")
    a.e(f"s_add_u32 s36, s36, {WS_X1}")
    a.e("s_add_u32 s37, s36, 4096")
    a.e("s_waitcnt lgkmcnt(0)")
    BUF = 28
    def tb_(b, i): return BUF + 36 * b + 4 * i
    def wb_(b, i): return BUF + 36 * b + 16 + 4 * i
    def ldT(b, i):
        r = tb_(b, i)
        a.e(f"buffer_load_dwordx4 v[{r}:{r+3}], v3, s[8:11], s30 offen offset:{i*1024}")
    def ldW(b, i):
        r = wb_(b, i)
        a.e(f"buffer_load_dwordx4 v[{r}:{r+3}], v{3 if i<4 else 4}, s[8:11], s31 offen offset:{(i%4)*1024}")
    def adv():
        a.e("s_add_u32 s30, s30, 4096")
        a.e("s_add_u32 s31, s31, 5120")
    for j in range(3):
        a.e(f"buffer_load_dwordx2 v[{10+2*j}:{11+2*j}], v7, s[4:7], s35 offen offset:{64*j}")
        a.e(f"buffer_load_dwordx2 v[{16+2*j}:{17+2*j}], v8, s[8:11], s{36 if j<2 else 37} offen offset:{(2048*j)%4096}")
    a.e("s_cmp_ge_u32 s24, 6")
    a.e("s_cselect_b32 s38, 6, 5")
    a.e("s_cbranch_scc1 Ll3_p1")
    a.e("s_cmp_ge_u32 s24, 4")
    a.e("s_cbranch_scc1 Ll3_p2")
    for r in (3, 2, 1):
        a.label(f"Ll3_p{r}")
        for j in range(4):
            b = (r + j) % 4
            for i in range(5): ldW(b, i)
            for i in range(4): ldT(b, i)
            adv()
            if j == 0:
                pass
        for i in range(80):
            a.e(f"v_accvgpr_write_b32 a{i}, 0")
        if PROF:
            stamp(a, 1); a.e("s_waitcnt vmcnt(27)"); stamp(a, 2)
        a.e(f"s_branch Ll3_pos{r}b")
    def step(b, loads):
        for ni in range(5):
            for ti in range(4):
                t = ni * 4 + ti
                a.e(f"v_mfma_f32_16x16x32_bf16 a[{4*t}:{4*t+3}], v[{wb_(b,ni)}:{wb_(b,ni)+3}], v[{tb_(b,ti)}:{tb_(b,ti)+3}], a[{4*t}:{4*t+3}]")
                if loads:
                    if ti == 3 and ni < 4: ldW(b, ni)
                    if ni == 4: ldT(b, ti)
                    if ni == 4 and ti == 3:
                        ldW(b, 4); adv()
    a.label("Ll3_loop")
    for b in range(4):
        a.label(f"Ll3_pos{b}b")
        a.e("s_waitcnt vmcnt(27)")
        step(b, True)
    a.e("s_sub_u32 s38, s38, 1")
    a.e("s_cmp_lg_u32 s38, 0")
    a.e("s_cbranch_scc1 Ll3_loop")
    stamp(a, 3)
    for b in range(4):
        a.e(f"s_waitcnt vmcnt({27-9*b})")
        step(b, False)
    stamp(a, 4)
    a.e("s_mul_i32 s39, s24, 20480")
    a.e("v_add_u32 v4, s39, v3")
    a.nop(8)
    for t in range(20):
        a.e(f"ds_write_b128 v4, a[{4*t}:{4*t+3}] offset:{t*1024}")
    a.e("s_lshl_b32 s39, s24, 10")
    a.e("v_add_u32 v4, s39, v3")
    a.e("v_add_u32 v5, 0x14000, v4")
    a.e(f"v_mov_b32 v9, 0xffff0000")
    a.e("s_waitcnt lgkmcnt(0)")
    a.e("s_barrier")
    stamp(a, 5)
    def rdred(j):
        for w in range(8):
            r = BUF + 32 * j + 4 * w
            off = (w % 4) * 20480 + j * 8192
            if off > 65535:
                a.e(f"ds_read_b128 v[{r}:{r+3}], v{6 if w<4 else 1} offset:{off-0x8000}")
            else:
                a.e(f"ds_read_b128 v[{r}:{r+3}], v{4 if w<4 else 5} offset:{off}")
    a.e("v_add_u32 v6, 0x8000, v4")
    a.e("v_add_u32 v1, 0x8000, v5")
    rdred(0); rdred(1)
    def fin(j):
        R = BUF + 32 * j
        T = 130
        for i in range(4):
            a.e(f"v_add_f32 v{R+i}, v{R+i}, v{R+4+i}")
            a.e(f"v_add_f32 v{R+8+i}, v{R+8+i}, v{R+12+i}")
            a.e(f"v_add_f32 v{R+16+i}, v{R+16+i}, v{R+20+i}")
            a.e(f"v_add_f32 v{R+24+i}, v{R+24+i}, v{R+28+i}")
        for i in range(4):
            a.e(f"v_add3_f32 v{R+i}, v{R+i}, v{R+8+i}, v{R+16+i}" if False else f"v_add_f32 v{R+i}, v{R+i}, v{R+8+i}")
            a.e(f"v_add_f32 v{R+i}, v{R+i}, v{R+16+i}")
        for h in range(2):
            a.e(f"v_lshlrev_b32 v{T+2*h}, 16, v{16+2*j+h}")
            a.e(f"v_and_b32 v{T+2*h+1}, v9, v{16+2*j+h}")
            a.e(f"v_lshlrev_b32 v{T+4+2*h}, 16, v{10+2*j+h}")
            a.e(f"v_and_b32 v{T+4+2*h+1}, v9, v{10+2*j+h}")
        for i in range(4): a.e(f"v_add_f32 v{T+i}, v{T+i}, v{R+24+i}")
        for i in range(4): a.e(f"v_mul_f32 v{T+8+i}, {fx(-LOG2E)}, v{T+i}")
        for i in range(4): a.e(f"v_exp_f32 v{T+8+i}, v{T+8+i}")
        for i in range(4): a.e(f"v_add_f32 v{T+8+i}, 1.0, v{T+8+i}")
        for i in range(4): a.e(f"v_rcp_f32 v{T+8+i}, v{T+8+i}")
        for i in range(4): a.e(f"v_mul_f32 v{T+i}, v{T+i}, v{T+8+i}")
        for i in range(4): a.e(f"v_fma_f32 v{T+i}, v{T+i}, v{R+i}, v{T+4+i}")
        a.e(f"v_cvt_pk_bf16_f32 v{R}, v{T}, v{T+1}")
        a.e(f"v_cvt_pk_bf16_f32 v{R+1}, v{T+2}, v{T+3}")
        a.e(f"buffer_store_dwordx2 v[{R}:{R+1}], v7, s[12:15], s35 offen offset:{64*j}")
    a.e("s_cmp_ge_u32 s24, 4")
    a.e("s_cbranch_scc1 Ll3_two")
    a.e("s_waitcnt lgkmcnt(8)")
    rdred(2)
    fin(0)
    a.e("s_waitcnt lgkmcnt(8)")
    fin(1)
    a.e("s_waitcnt lgkmcnt(0)")
    fin(2)
    stamp_store(a, 6, vb=140)
    a.e("s_endpgm")
    a.label("Ll3_two")
    a.e("s_waitcnt lgkmcnt(8)")
    fin(0)
    a.e("s_waitcnt lgkmcnt(0)")
    fin(1)
    stamp_store(a, 6, vb=140)
    a.label("Ll3_end")
    a.e("s_endpgm")
    return Kern("l3_kernel", grid, 512, 163840, a.text(), 172 + 80, 172, 100)
```

```python
import sys
sys.path.insert(0, "dev")
from common import *
from k_gemm import gemm128_kernel
from k_l1 import l1_kernel
from k_l3 import l3_kernel
from k_l2 import l2_kernel
ks = [l1_kernel(), l2_kernel(), l3_kernel()]
out = sys.argv[1] if len(sys.argv) > 1 else "recurrent_scan__compressed_kv_cla__mixer_s_mlp__prompt.s"
open(out, "w").write(assemble_file(ks))
print("written", out)
```

```python
from common import *

def spin_wait(a, name, vreg, voff, srd, soff, target, barrier=False, cnt="s62"):
    a.e(f"v_readfirstlane_b32 s63, v{vreg}")
    a.e(f"s_cmp_ge_u32 s63, {target}")
    a.e(f"s_cbranch_scc1 {name}_ok")
    a.e(f"s_mov_b32 {cnt}, 8000")
    a.label(f"{name}_sp")
    if barrier: a.e("s_barrier")
    a.e("s_sleep 16")
    a.e(f"buffer_load_dword v{vreg}, v{voff}, s[{srd}:{srd+3}], {soff} offen sc1")
    a.e("s_waitcnt vmcnt(0)")
    a.e(f"v_readfirstlane_b32 s63, v{vreg}")
    a.e(f"s_cmp_ge_u32 s63, {target}")
    a.e(f"s_cbranch_scc1 {name}_ok")
    a.e(f"s_sub_u32 {cnt}, {cnt}, 1")
    a.e(f"s_cmp_lg_u32 {cnt}, 0")
    a.e(f"s_cbranch_scc1 {name}_sp")
    a.label(f"{name}_ok")

def l1_kernel():
    a = Asm()
    a.auto = True
    grid = 256
    SC = " sc1"
    stamp_init(a)
    load_srds(a, [(20, "x"), (4, "ckv"), (8, "ws"), (12, "wuk"), (16, "wuv"), (36, "dbg"), (40, "w1"), (44, "wo"), (48, "w4"), (52, "w3")])
    a.e("v_lshrrev_b32 v6, 6, v0")
    a.e("v_and_b32 v7, 63, v0")
    a.e("v_readfirstlane_b32 s24, v6")
    a.e(f"s_cmp_ge_u32 s2, {grid}")
    a.e("s_cbranch_scc1 Ll1_end")
    a.e("v_and_b32 v56, 7, v7")
    a.e("v_bfe_u32 v57, v7, 3, 2")
    a.e("v_lshrrev_b32 v58, 5, v7")
    a.e("v_mul_u32_u24 v59, 1280, v56")
    a.e("v_lshl_add_u32 v59, v57, 5, v59")
    a.e("v_lshl_add_u32 v59, v58, 4, v59")
    a.e("s_mul_i32 s27, s2, 10240")
    a.e("s_lshl_b32 s28, s24, 8")
    a.e("s_add_u32 s27, s27, s28")
    a.e("s_cmp_lt_u32 s24, 5")
    a.e("s_cselect_b64 s[56:57], -1, 0")
    a.e("s_and_b32 s25, s2, 7")
    a.e("s_lshl_b32 s25, s25, 2")
    a.e("s_bfe_u32 s28, s2, 0x20003")
    a.e("s_add_u32 s25, s25, s28")
    a.e("s_lshr_b32 s26, s2, 5")
    TMP = 96
    a.e(f"v_lshrrev_b32 v6, 3, v7")
    a.e(f"v_and_b32 v5, 7, v7")
    a.e(f"v_lshrrev_b32 v4, 1, v6")
    a.e(f"v_xor_b32 v5, v5, v4")
    a.e(f"v_lshlrev_b32 v6, 10, v6")
    a.e(f"v_lshl_add_u32 v{TMP}, v5, 4, v6")
    a.e(f"v_xor_b32 v{TMP+1}, 64, v{TMP}")
    a.e("s_waitcnt lgkmcnt(0)")
    a.e("s_mov_b64 exec, s[56:57]")
    a.vmem("buffer_load_dwordx4 v[32:35], v59, s[20:23], s27 offen", "LX")
    a.vmem("buffer_load_dwordx4 v[36:39], v59, s[20:23], s27 offen offset:128", "LX")
    a.e("s_mov_b64 exec, -1")
    a.e("s_lshl_b32 s28, s26, 18")
    a.e("s_lshl_b32 s27, s24, 15")
    a.e("s_add_u32 s28, s28, s27")
    a.e("s_lshl_b32 s29, s24, 12")
    def dmaA(c, slot, i):
        a.e(f"s_add_u32 m0, s29, {slot*32768 + i*1024}")
        a.e(f"s_add_u32 s33, s28, {i*8192 + c*128}")
        a.vmem(f"buffer_load_dwordx4 v{TMP+(i&1)}, s[4:7], s33 offen lds", ("A", c))
    def dmaW(j, slot, i):
        a.e(f"s_add_u32 m0, s29, {slot*32768 + i*1024}")
        if j < 4:
            a.e(f"s_add_u32 s33, s30, {(j*128 + 4*i)*8192}")
            a.vmem(f"buffer_load_dwordx4 v1, s[12:15], s33 offen lds", ("W", j))
        else:
            ch, kk = (j - 4) >> 1, (j - 4) & 1
            a.e(f"s_add_u32 s33, s30, {(kk*256 + 4*i)*8192 + ch*128}")
            a.vmem(f"buffer_load_dwordx4 v2, s[16:19], s33 offen lds", ("W", j))
    for i in range(4): dmaA(0, 3, i)
    a.e("v_bfe_u32 v4, v7, 2, 2")
    a.e("v_and_b32 v5, 3, v7")
    a.e("v_lshlrev_b32 v6, 13, v4")
    a.e("v_lshl_add_u32 v6, v5, 4, v6")
    a.e("v_lshrrev_b32 v3, 4, v7")
    a.e("v_lshl_add_u32 v1, v3, 6, v6")
    a.e("v_bfe_u32 v3, v7, 4, 1")
    a.e("v_lshl_add_u32 v2, v3, 6, v6")
    a.e("v_lshrrev_b32 v6, 5, v7")
    a.e("v_lshl_add_u32 v2, v6, 20, v2")
    a.e("s_lshl_b32 s30, s24, 17")
    a.e("s_lshl_b32 s27, s25, 8")
    a.e("s_add_u32 s30, s30, s27")
    for i in range(4): dmaW(0, 2, i)
    for i in range(4): dmaA(1, 0, i)
    for i in range(4): dmaA(2, 1, i)
    a.e("v_lshlrev_b32 v3, 5, v3")
    a.e("v_lshl_add_u32 v3, v6, 11, v3")
    a.e("v_lshl_add_u32 v3, v4, 6, v3")
    a.e("v_lshl_add_u32 v3, v5, 3, v3")
    AR = TMP + 2
    a.e(f"v_and_b32 v4, 31, v7")
    a.e(f"v_bfe_u32 v5, v7, 1, 3")
    a.e(f"v_xor_b32 v5, v5, v6")
    a.e(f"v_lshlrev_b32 v5, 4, v5")
    a.e(f"v_lshl_add_u32 v5, v4, 7, v5")
    a.e(f"v_add_u32 v5, s29, v5")
    for k4 in range(4):
        a.e(f"v_xor_b32 v{AR+k4}, {k4*32}, v5")
        a.e(f"v_add_u32 v{AR+4+k4}, 0x18000, v{AR+k4}")
    a.e("v_add_u32 v4, 0x10000, v3")
    a.e("v_add_u32 v5, 0x20000, v3")
    a.e("v_lshlrev_b32 v0, 4, v7")
    a.e("s_lshl_b32 s34, s25, 20")
    a.e("s_lshl_b32 s27, s26, 17")
    a.e("s_add_u32 s34, s34, s27")
    a.e("s_lshr_b32 s27, s24, 1")
    a.e("s_lshl_b32 s27, s27, 15")
    a.e("s_add_u32 s34, s34, s27")
    a.e("s_and_b32 s27, s24, 1")
    a.e("s_lshl_b32 s35, s27, 11")
    a.e("s_add_u32 s35, s35, s34")
    a.e("s_add_u32 s35, s35, 16384")
    a.e("s_lshl_b32 s27, s27, 13")
    a.e("s_add_u32 s34, s34, s27")
    a.e("v_lshrrev_b32 v60, 3, v7")
    a.e("v_lshlrev_b32 v60, 12, v60")
    a.e("v_lshl_add_u32 v60, v56, 6, v60")
    a.e("s_lshl_b32 s27, s24, 3")
    a.e("s_add_u32 s27, s27, 0x20000")
    a.e("v_add_u32 v60, s27, v60")
    a.e("s_add_u32 s27, s29, 0x20000")
    a.e("v_lshlrev_b32 v61, 6, v56")
    a.e("v_add_u32 v61, s27, v61")
    a.e("v_lshlrev_b32 v62, 10, v57")
    a.e("v_lshl_add_u32 v62, v58, 9, v62")
    a.e("v_lshl_add_u32 v62, v56, 4, v62")
    a.e("s_and_b32 s27, s2, 3")
    a.e("s_lshl_b32 s27, s27, 7")
    a.e("v_add_u32 v62, s27, v62")
    a.e("s_lshr_b32 s27, s2, 2")
    a.e("s_mul_i32 s27, s27, 40960")
    a.e("s_lshl_b32 s31, s24, 13")
    a.e("s_add_u32 s27, s27, s31")
    a.e("s_mov_b32 s58, 0x3f803f80")
    a.e("v_mov_b32 v63, 0xffff0000")
    a.e("s_mov_b64 exec, s[56:57]")
    stamp(a, 9)
    a.wait_vm("LX")
    stamp(a, 10)
    def ln(rnd, dst, wsoff):
        S, Q, T = 64, 65, 66
        for i in range(8):
            a.e(f"v_dot2_f32_bf16 v{S}, v{32+i}, s58, {'0' if i==0 else 'v%d'%S}")
            a.e(f"v_dot2_f32_bf16 v{Q}, v{32+i}, v{32+i}, {'0' if i==0 else 'v%d'%Q}")
        for i in range(4):
            a.e(f"v_lshlrev_b32 v{40+2*i}, 16, v{32+i}")
            a.e(f"v_and_b32 v{41+2*i}, v63, v{32+i}")
        a.e(f"v_add_f32_dpp v{S}, v{S}, v{S} row_ror:8 row_mask:0xf bank_mask:0xf")
        a.e(f"v_add_f32_dpp v{Q}, v{Q}, v{Q} row_ror:8 row_mask:0xf bank_mask:0xf")
        for pl in ("16", "32"):
            a.e(f"v_mov_b32 v{T}, v{S}")
            a.e(f"v_mov_b32 v{T+1}, v{Q}")
            a.e(f"v_permlane{pl}_swap_b32 v{T}, v{S}")
            a.e(f"v_permlane{pl}_swap_b32 v{T+1}, v{Q}")
            a.e(f"v_add_f32 v{S}, v{S}, v{T}")
            a.e(f"v_add_f32 v{Q}, v{Q}, v{T+1}")
        a.e(f"ds_write_b64 v60, v[{S}:{Q}] offset:{rnd*512}")
        for i in range(4, 8):
            a.e(f"v_lshlrev_b32 v{40+2*i}, 16, v{32+i}")
            a.e(f"v_and_b32 v{41+2*i}, v63, v{32+i}")
        a.e("s_waitcnt lgkmcnt(0)")
        a.e("s_barrier")
        a.e(f"ds_read_b128 v[68:71], v61 offset:{rnd*512}")
        a.e(f"ds_read_b128 v[72:75], v61 offset:{rnd*512+16}")
        a.e(f"ds_read_b64 v[76:77], v61 offset:{rnd*512+32}")
        a.e("s_waitcnt lgkmcnt(0)")
        for k in range(2):
            a.e(f"v_add_f32 v{68+k}, v{68+k}, v{70+k}")
            a.e(f"v_add_f32 v{72+k}, v{72+k}, v{74+k}")
        for k in range(2):
            a.e(f"v_add_f32 v{68+k}, v{68+k}, v{72+k}")
            a.e(f"v_add_f32 v{68+k}, v{68+k}, v{76+k}")
        a.e(f"v_mul_f32 v68, {fx(1/640)}, v68")
        a.e(f"v_mul_f32 v69, {fx(1/640)}, v69")
        a.e("v_fma_f32 v69, -v68, v68, v69")
        a.e("v_max_f32 v69, 0, v69")
        a.e(f"v_add_f32 v69, {fx(1e-5)}, v69")
        a.e("v_rsq_f32 v69, v69")
        a.e("v_mul_f32 v68, v68, v69")
        for i in range(16): a.e(f"v_fma_f32 v{40+i}, v{40+i}, v69, -v68")
        for i in range(8):
            a.e(f"v_cvt_pk_bf16_f32 v{dst+i}, v{40+2*i}, v{41+2*i}")
            if rnd == 0: a.e(f"v_mov_b32 v{32+i}, v{dst+i}")
        for h in range(2):
            a.e(f"v_permlane32_swap_b32 v{dst+4*h}, v{dst+4*h+2}")
            a.e(f"v_permlane32_swap_b32 v{dst+4*h+1}, v{dst+4*h+3}")
        for h in range(2):
            a.e(f"s_add_u32 s31, s27, {wsoff + 4096*h}")
            a.vmem(f"buffer_store_dwordx4 v[{dst+4*h}:{dst+4*h+3}], v62, s[8:11], s31 offen{SC}", "LS")
    ln(0, 80, WS_XN)
    ln(1, 88, WS_XN2)
    a.e("s_mov_b64 exec, -1")
    stamp(a, 11)
    for i in range(4): dmaA(3, 4, i)
    def rdA(c, slot, k4):
        s = 4 * c + k4
        if slot < 3: r, off = AR + k4, slot * 32768
        else: r, off = AR + 4 + k4, (slot - 3) * 32768
        a.ds(f"ds_read_b128 a[{4*s}:{4*s+3}], v{r} offset:{off}", ("RA", c))
    stamp(a, 5)
    a.wait_vm(("A", 0))
    for k4 in range(4): rdA(0, 3, k4)
    a.wait_vm(("A", 1))
    stamp(a, 6)
    for k4 in range(4): rdA(1, 0, k4)
    a.wait_lg0()
    for i in range(4): dmaW(1, 3, i)
    stamp(a, 7)
    for i in range(4): dmaA(4, 0, i)
    stamp(a, 8)
    wslot = {0: 2, 1: 3, 2: 4, 3: 0, 4: 1, 5: 2, 6: 3, 7: 4}
    FR, NF, D = 8, 6, 5
    KACC, V1, V2 = 32, 96, 32
    seq = []
    for j in range(4):
        for ks in range(8):
            for db in range(4): seq.append((j, ks, db))
    for j in range(4, 8):
        for ks in range(16):
            for db in range(2): seq.append((j, ks, db))
    NG = len(seq)
    def rd(n):
        f = FR + 4 * (n % NF)
        if n >= NG:
            ks = n - NG
            if ks == 0:
                a.wait_vm("W1")
                a.e("s_barrier")
            sl = ks // 16
            off = (sl % 2) * 32768 + (ks % 8) * 4096 + ((ks % 16) // 8) * 512
            base = 6 + sl // 2
            a.ds(f"ds_read_b64_tr_b16 v[{f}:{f+1}], v{base} offset:{off}", ("F", n))
            a.ds(f"ds_read_b64_tr_b16 v[{f+2}:{f+3}], v{base} offset:{off+2048}", ("F", n))
            return
        j, ks, db = seq[n]
        if ks == 0 and db == 0:
            a.wait_vm(("W", j))
            a.e("s_barrier")
            if j == 1:
                a.e("s_cmp_lg_u32 s24, 0")
                a.e("s_cbranch_scc1 Ll1_nf")
                a.e("s_lshr_b32 s31, s2, 4")
                a.e("s_lshl_b32 s31, s31, 2")
                a.e("v_mov_b32 v106, 1")
                a.e("v_mov_b32 v107, 0")
                a.e("s_mov_b64 exec, 1")
                a.e("buffer_atomic_add v106, v107, s[36:39], s31 offen sc1")
                a.e("s_mov_b64 exec, -1")
                a.label("Ll1_nf")
        sl = wslot[j]
        base = [3, 3, 4, 4, 5][sl]
        off = (sl % 2) * 32768 + (ks % 8) * 4096 + db * 256 + (ks // 8) * 512
        a.ds(f"ds_read_b64_tr_b16 v[{f}:{f+1}], v{base} offset:{off}", ("F", n))
        a.ds(f"ds_read_b64_tr_b16 v[{f+2}:{f+3}], v{base} offset:{off+1024}", ("F", n))
    ev = {}
    def at(n, fn, e=None): (ev if e is None else e).setdefault(n, []).append(fn)
    def sched_rdA(n0, cs, slots):
        n = n0
        for c, sl in zip(cs, slots):
            at(n, (lambda c=c: a.wait_vm(("A", c))))
            for k4 in range(4):
                at(n + k4 // 2, (lambda c=c, sl=sl, k4=k4: rdA(c, sl, k4)))
            n += 2
    def sched_dma(n0, fn, idx, slot, dep=None):
        for i in range(4):
            if dep is not None and i == 0: at(n0, (lambda dep=dep: a.wait_lg(dep)))
            at(n0 + i, (lambda i=i: fn(idx, slot, i)))
    sched_rdA(1, [2], [1])
    sched_dma(7, dmaA, 5, 1, [("RA", 2)])
    sched_rdA(12, [3], [4])
    sched_dma(17, dmaW, 2, 4, [("RA", 3)])
    sched_rdA(24, [4], [0])
    sched_dma(30, dmaA, 6, 0, [("RA", 4)])
    sched_rdA(38, [5], [1])
    sched_dma(44, dmaA, 7, 1, [("RA", 5)])
    sched_rdA(55, [6], [0])
    sched_dma(61, dmaW, 3, 0, [("RA", 6)])
    sched_dma(65, dmaW, 5, 2)
    sched_rdA(70, [7], [1])
    sched_dma(76, dmaW, 4, 1, [("RA", 7)])
    sched_dma(94, dmaW, 6, 3)
    sched_dma(110, dmaW, 7, 4)
    def pack(n0, acc, ndb, store):
        n = n0
        for db in range(ndb):
            for i in range(8):
                r = acc + 16 * db
                at(n + i // 2, (lambda r=r, i=i: a.e(f"v_cvt_pk_bf16_f32 v{r+i}, v{r+2*i}, v{r+2*i+1}")))
            at(n + 4, (lambda db=db: store(db, 0)))
            at(n + 5, (lambda db=db: store(db, 1)))
            n += 6
    def stK(db, rh):
        r = KACC + 16 * db + 4 * rh
        ds_ = 2 * db + rh
        if ds_ == 4: a.e("s_add_u32 s34, s34, 4096")
        a.vmem(f"buffer_store_dwordx4 v[{r}:{r+3}], v0, s[8:11], s34 offen offset:{(ds_%4)*1024}{SC}", "ST")
    def stV(acc):
        def f(db, rh):
            r = acc + 16 * db + 4 * rh
            a.vmem(f"buffer_store_dwordx4 v[{r}:{r+3}], v0, s[8:11], s35 offen offset:{rh*1024}{SC}", "ST")
            if rh == 1: a.e("s_add_u32 s35, s35, 4096")
        return f
    pack(131, KACC, 4, stK)
    pack(195, V1, 2, stV(V1))
    pack(258, V2, 2, stV(V2))
    def xreg(s):
        if s < 4: return f"v[{80+4*s}:{83+4*s}]"
        if s < 20: return f"a[{4*(s-4)}:{4*(s-4)+3}]"
        if s < 28: return f"v[{96+4*(s-20)}:{99+4*(s-20)}]"
        return f"a[{64+4*(s-28)}:{67+4*(s-28)}]"
    def run(n0, n1, nmf, ex):
        for n in range(n0, n1):
            for fn in ev.get(n, []): fn()
            for fn in ex.get(n, []): fn()
            if n >= nmf: continue
            if n % 32 == 0 and n <= 96: stamp(a, 1 + n // 32)
            if n + D < nmf: rd(n + D)
            a.wait_lg(("F", n))
            f = FR + 4 * (n % NF)
            if n >= NG:
                s = n - NG
                a.wait_vm(("X", s))
                a.e(f"v_mfma_f32_32x32x16_bf16 v[64:79], v[{f}:{f+3}], {xreg(s)}, {'0' if s==0 else 'v[64:79]'}")
                continue
            j, ks, db = seq[n]
            if j < 4:
                s = j * 8 + ks
                if ks == 0 and db == 0: a.wait_lg([("RA", 2 * j), ("RA", 2 * j + 1)])
                d = f"v[{KACC+16*db}:{KACC+16*db+15}]"
                c = "0" if s == 0 else d
                a.e(f"v_mfma_f32_32x32x16_bf16 {d}, v[{f}:{f+3}], a[{4*s}:{4*s+3}], {c}")
            else:
                ch, kk = (j - 4) >> 1, (j - 4) & 1
                s = kk * 16 + ks
                acc = V1 if ch == 0 else V2
                d = f"v[{acc+16*db}:{acc+16*db+15}]"
                c = "0" if s == 0 else d
                a.e(f"v_mfma_f32_32x32x16_bf16 {d}, a[{4*s}:{4*s+3}], v[{f}:{f+3}], {c}")
    def spread(ex, n0, ops, per=2):
        for k, o in enumerate(ops):
            at(n0 + k // per, (lambda o=o: a.e(o)), ex)
    for n in range(D): rd(n)
    NB = 116
    run(0, NB, NG, {})
    a.e("s_cmp_ge_u32 s2, 160")
    a.e("s_cbranch_scc1 Ll1_pk")
    save = (list(a.vm), list(a.lg), list(a.hist))
    ex = {}
    spread(ex, NB, [
        "s_and_b32 s25, s2, 7", "s_lshr_b32 s26, s2, 3", "s_lshl_b32 s25, s25, 1",
        "s_sub_u32 s27, s26, 10", "s_add_u32 s28, s25, 1", "s_cmp_ge_u32 s26, 10\ns_cselect_b32 s25, s28, s25\ns_cselect_b32 s26, s27, s26",
        "s_lshl_b32 s59, s25, 2",
        "v_mov_b32 v6, 0",
        "v_bfe_u32 v1, v0, 6, 2",
        "v_mul_u32_u24 v1, 1280, v1",
        "v_and_b32 v7, 0x30, v0",
        "v_add_u32 v1, v1, v7",
        "v_bfe_u32 v7, v0, 8, 1",
        "v_lshl_add_u32 v1, v7, 6, v1",
        "v_lshrrev_b32 v7, 9, v0",
        f"v_mul_u32_u24 v7, {128*1280}, v7",
        "v_add_u32 v1, v1, v7",
        f"s_mul_i32 s30, s24, {16*1280}", "s_lshl_b32 s27, s26, 7", "s_add_u32 s30, s30, s27",
        "s_and_b32 s27, s24, 3", "s_add_u32 s27, s27, s59",
        "s_mul_i32 s60, s27, 40960", f"s_add_u32 s60, s60, {WS_XN2}",
        "s_lshl_b32 s61, s27, 5",
        "s_lshr_b32 s28, s24, 2",
        "s_lshl_b32 s27, s26, 1", "s_add_u32 s27, s27, s28",
        "s_mov_b32 s31, 1",
        "s_cmp_ge_u32 s27, 5\ns_cselect_b32 s31, -1, s31",
        "s_cmp_ge_u32 s27, 10\ns_cselect_b32 s31, 2, s31",
        "s_cmp_ge_u32 s27, 15\ns_cselect_b32 s31, -2, s31",
        "s_add_u32 s61, s61, s31",
        "s_lshl_b32 s32, s27, 11", f"s_add_u32 s32, s32, {WS_HS}",
        "s_lshl_b32 s28, s28, 8",
    ], 3)
    at(129, lambda: a.vmem("buffer_load_dword v7, v6, s[36:39], s59 offen sc1", "FL"), ex)
    def dmaW1(p, i):
        a.e(f"s_add_u32 m0, s29, {p*32768 + i*1024}")
        a.e(f"s_add_u32 s33, s30, {(p*256 + 4*i)*1280}")
        a.vmem(f"buffer_load_dwordx4 v1, s[40:43], s33 offen lds", "W1")
    for p in range(3):
        for i in range(4): at(133 + 32 * p + 2 * i, (lambda p=p, i=i: dmaW1(p, i)), ex)
    def poll():
        a.wait_vm("FL")
        spin_wait(a, "Ll1_w", 7, 6, 36, "s59", 16)
    at(159, poll, ex)
    def ldX(s):
        a.e(f"s_add_u32 s33, s60, {(s//4)*4096}")
        a.vmem(f"buffer_load_dwordx4 {xreg(s)}, v0, s[8:11], s33 offen offset:{(s%4)*1024} sc1", ("X", s))
    for s in range(40):
        n = 160 + s if s < 4 else 194 + 2 * (s - 4) if s < 20 else 209 + 2 * (s - 20) if s < 28 else 226 + 2 * (s - 28)
        at(n, (lambda s=s: ldX(s)), ex)
    spread(ex, 174, [
        "v_lshrrev_b32 v7, 9, v0",
        "v_lshlrev_b32 v6, 10, v7",
        "v_and_b32 v2, 0xc0, v0",
        "v_add_u32 v6, v6, v2",
        "v_bfe_u32 v2, v0, 8, 1",
        "v_lshl_add_u32 v6, v2, 5, v6",
        "v_bfe_u32 v2, v0, 4, 2",
        "v_lshl_add_u32 v6, v2, 3, v6",
        "v_add_u32 v6, s28, v6",
        "v_bfe_u32 v2, v0, 4, 5",
        "v_add_u32 v2, s61, v2",
        "v_cmp_gt_u32 vcc, 0x800, v2",
        "v_and_b32 v64, 31, v2",
        "v_bfe_u32 v2, v2, 5, 6",
        "v_mul_u32_u24 v2, 0xa000, v2",
        "v_lshl_add_u32 v2, v64, 4, v2",
        "v_lshl_add_u32 v2, v7, 9, v2",
        "v_add_u32 v7, 0x10000, v6",
    ], 1)
    run(NB, NG + 40, NG + 40, ex)
    stamp(a, 12)
    a.e(f"v_mov_b32 v32, {fx(GC2)}")
    for l in interleave([gelu_ops(64 + i, 33 + i, 32) for i in range(16)]): a.e(l)
    for i in range(8):
        a.e(f"v_cvt_pk_bf16_f32 v{64+i}, v{64+2*i}, v{65+2*i}")
    for i in range(8):
        a.e(f"v_cndmask_b32 v{64+i}, 0, v{64+i}, vcc")
    for rh in range(2):
        a.e(f"buffer_store_dwordx4 v[{64+4*rh}:{67+4*rh}], v2, s[8:11], s32 offen offset:{rh*1024}{SC}")
    stamp_store(a, 1, vb=96)
    a.e("s_endpgm")
    a.label("Ll1_pk")
    a.vm, a.lg, a.hist = list(save[0]), list(save[1]), list(save[2])
    ex = {}
    spread(ex, NB, [
        "s_sub_u32 s25, s2, 160",
        "s_sub_u32 s26, s25, 42",
        "s_cmp_ge_u32 s25, 42\ns_cselect_b32 s54, s54, 0\ns_cselect_b64 s[56:57], -1, 0\ns_cselect_b32 s26, s26, 0",
        "v_lshrrev_b32 v1, 6, v0",
        "v_mul_u32_u24 v1, 3456, v1",
        "v_and_b32 v7, 0x30, v0",
        "v_add_u32 v1, v1, v7",
        f"s_mul_i32 s30, s24, {80*3456}", "s_lshl_b32 s27, s26, 6", "s_add_u32 s30, s30, s27",
        "s_mul_i32 s59, s24, 5120",
        "s_sub_u32 s27, s25, 64",
        f"s_cmp_ge_u32 s25, 64\ns_cselect_b64 s[44:45], s[48:49], s[44:45]\ns_cselect_b32 s46, s50, s46\ns_cselect_b32 s27, s27, s25\ns_cselect_b32 s28, 54, 128\ns_cselect_b32 s61, {WS_W4P-WS_WOP}, 0",
        "s_mul_i32 s60, s27, 81920", "s_add_u32 s60, s60, s59",
        "s_mul_i32 s28, s28, s24", "s_lshl_b32 s27, s27, 1", "s_add_u32 s28, s28, s27", "s_mul_i32 s28, s28, 5120",
        "s_add_u32 s61, s61, s28", f"s_add_u32 s61, s61, {WS_WOP}",
        "s_mul_i32 s27, s26, 43", "s_lshr_b32 s27, s27, 8",
        "s_mul_i32 s28, s27, 234", "s_add_u32 s28, s28, s26",
        "s_mul_i32 s27, s24, 30", "s_add_u32 s28, s28, s27", "s_lshl_b32 s28, s28, 10", f"s_add_u32 s32, s28, {WS_W3P}",
        "v_lshrrev_b32 v7, 9, v0", "v_lshlrev_b32 v6, 8, v7", "v_and_b32 v2, 0xc0, v0", "v_add_u32 v6, v6, v2",
        "v_bfe_u32 v2, v0, 8, 1", "v_lshl_add_u32 v6, v2, 5, v6", "v_bfe_u32 v2, v0, 4, 2", "v_lshl_add_u32 v6, v2, 3, v6",
        "v_add_u32 v6, s59, v6",
        "v_lshlrev_b32 v7, 4, v7", "v_bfe_u32 v2, v0, 8, 1", "v_lshl_add_u32 v7, v2, 2, v7", "v_bfe_u32 v2, v0, 6, 2", "v_add_u32 v7, v7, v2",
        "v_mul_u32_u24 v7, 1280, v7", "v_bfe_u32 v2, v0, 4, 2", "v_lshl_add_u32 v7, v2, 3, v7",
        "s_mul_i32 s27, s24, 160", "s_add_u32 s27, s27, 40960", "v_add_u32 v7, s27, v7",
    ], 2)
    def dB(i):
        a.e(f"s_add_u32 m0, s59, {i*1024}")
        a.e(f"s_add_u32 s33, s30, {i*16*3456}")
        a.vmem(f"buffer_load_dwordx4 v1, s[52:55], s33 offen lds", "PB")
    def dA(u, i):
        a.e(f"s_add_u32 m0, s59, {40960*(u+1) + i*1024}")
        a.e(f"s_add_u32 s33, s60, {40960*u + i*1024}")
        a.vmem(f"buffer_load_dwordx4 v0, s[44:47], s33 offen lds", "PA")
    for i in range(5):
        at(165 + 2 * i, (lambda i=i: dB(i)), ex)
        at(197 + 2 * i + (i > 0) * 8, (lambda i=i: dA(0, i)), ex)
        at(229 + 2 * i, (lambda i=i: dA(1, i)), ex)
    at(216, lambda: a.wait_vm("PB"), ex)
    for i in range(5):
        at(216 + i, (lambda i=i: (a.ds(f"ds_read_b64_tr_b16 v[{64+4*i}:{65+4*i}], v6 offset:{i*1024}", "RB"),
                                  a.ds(f"ds_read_b64_tr_b16 v[{66+4*i}:{67+4*i}], v6 offset:{i*1024+512}", "RB"))), ex)
    at(226, lambda: a.wait_lg("RB"), ex)
    def stB(i):
        a.e("s_mov_b64 exec, s[56:57]")
        a.vmem(f"buffer_store_dwordx4 v[{64+4*i}:{67+4*i}], v0, s[8:11], s32 offen{SC}", "ST")
        a.e("s_mov_b64 exec, -1")
        a.e("s_add_u32 s32, s32, 6144")
    for i in range(5): at(226 + 2 * i, (lambda i=i: stB(i)), ex)
    spread(ex, 238, [f"v_dot2_f32_bf16 v84, v{64+i}, s58, {'0' if i==0 else 'v84'}" for i in range(20)] +
           ["v_lshrrev_b32 v86, 2, v0", "v_add_u32 v86, s59, v86"], 1)
    at(262, lambda: a.ds("ds_write_b32 v86, v84", "WB"), ex)
    run(NB, NG + 16, NG, ex)
    a.wait_vm("PA")
    a.wait_lg0()
    a.e("s_barrier")
    stamp(a, 12)
    a.e("s_cmp_ge_u32 s25, 91")
    a.e("s_cbranch_scc1 Ll1_pk2")
    for u in range(2):
        for i in range(5):
            r = 64 + 20 * u + 4 * i
            a.e(f"ds_read_b64_tr_b16 v[{r}:{r+1}], v7 offset:{40960*u + 32*i}")
            a.e(f"ds_read_b64_tr_b16 v[{r+2}:{r+3}], v7 offset:{40960*u + 32*i + 10240}")
        if u == 0: a.e("s_waitcnt lgkmcnt(4)")
    for k in range(10):
        r = 64 + 4 * k
        if k == 0: a.e("s_waitcnt lgkmcnt(10)")
        if k == 5: a.e("s_waitcnt lgkmcnt(0)")
        if k % 4 == 0 and k: a.e("s_add_u32 s61, s61, 4096")
        a.e(f"buffer_store_dwordx4 v[{r}:{r+3}], v0, s[8:11], s61 offen offset:{(k%4)*1024}{SC}")
    a.label("Ll1_pk2")
    a.hist = []
    a.e("s_cmp_lg_u32 s24, 7")
    a.e("s_cbranch_scc1 Ll1_pk3")
    a.e("s_cmp_lt_u32 s25, 42")
    a.e("s_cbranch_scc1 Ll1_pk3")
    a.e("v_lshrrev_b32 v6, 2, v0")
    for w in range(8): a.e(f"ds_read_b32 v{8+w}, v6 offset:{5120*w}")
    a.e("s_waitcnt lgkmcnt(0)")
    for w in range(1, 8): a.e(f"v_add_f32 v8, v8, v{8+w}")
    a.e("v_mov_b32 v9, v8")
    a.e("v_permlane32_swap_b32 v9, v8")
    a.e("v_add_f32 v8, v8, v9")
    a.e("s_lshl_b32 s27, s26, 7")
    a.e(f"s_add_u32 s27, s27, {WS_CS3}")
    a.e("s_mov_b32 exec_hi, 0")
    a.e(f"buffer_store_dword v8, v6, s[8:11], s27 offen{SC}")
    a.e("s_mov_b64 exec, -1")
    a.label("Ll1_pk3")
    stamp_store(a, 1, vb=108)
    a.label("Ll1_end")
    a.e("s_endpgm")
    print("l1 auto nops:", a.nnop)
    return Kern("l1_kernel", grid, 512, 163840, a.text(), 256, 128, 100)
```

```python
from common import *
from k_l1 import spin_wait

S_, Q_, NM, P_, O_, FR = 16, 80, 112, 128, 144, 208
NF = 8
VB, VL0, VL1, VMX, VQ, VNEG, VG, VT0, VT1 = 7, 8, 9, 10, 11, 12, 13, 14, 15
VG2 = 0
THR = 8.0
SC = " sc1"
qpos = [2, 0, 1, 3, 4]
XB = [O_, O_ + 32, NM, Q_, O_]
PRIO = int(os.environ.get("PRIO", "1"))

def mf(a, d, A, B, c):
    a.e(f"v_mfma_f32_32x32x16_bf16 v[{d}:{d+15}], v[{A}:{A+3}], v[{B}:{B+3}], {c}")
def rng16(d): return f"v[{d}:{d+15}]"

def rot(a, sW, sX, wbase, wstep, xbase, p, k="s31"):
    a.e(f"s_mul_i32 s{sW+p}, {k}, {wstep}")
    a.e(f"s_add_u32 s{sW+p}, s{sW+p}, {wbase}")
    a.e(f"s_lshl_b32 s{sX+p}, {k}, 13")
    a.e(f"s_add_u32 s{sX+p}, s{sX+p}, {xbase}")
    a.e(f"s_add_u32 {k}, {k}, 1")
    a.e(f"s_cmp_eq_u32 {k}, 5")
    a.e(f"s_cselect_b32 {k}, 0, {k}")

def ldx(a, st, i):
    r = XB[st] + 4 * i
    a.vmem(f"buffer_load_dwordx4 v[{r}:{r+3}], v{VG if i < 4 else VG2}, s[8:11], s{45+st} offen offset:{(i%4)*1024}", ("X", st, i // 4))
def ldw(a, st, g):
    a.e(f"s_add_u32 m0, s35, {qpos[st]*32768 + g*8192}")
    a.e(f"s_add_u32 s31, s{40+st}, {g*32*8192}")
    a.vmem(f"buffer_load_dwordx4 v3, s[4:7], s31 offen lds", ("W", st, g // 2))
def qbatch(a):
    return ([lambda g=g: ldw(a, 0, g) for g in (0, 1)] + [lambda i=i: ldx(a, 0, i) for i in range(4)],
            [lambda g=g: ldw(a, 0, g) for g in (2, 3)] + [lambda i=i: ldx(a, 0, i) for i in range(4, 8)],
            [lambda g=g: ldw(a, 1, g) for g in range(4)])

def l2_kernel(D=7):
    a = Asm()
    a.auto = True
    grid = 256
    stamp_init(a)
    load_srds(a, [(4, "wq"), (8, "ws"), (12, "w2"), (16, "dbg")])
    a.e("v_lshrrev_b32 v1, 6, v0")
    a.e("v_and_b32 v2, 63, v0")
    a.e("v_readfirstlane_b32 s24, v1")
    a.e(f"s_cmp_ge_u32 s2, {grid}")
    a.e("s_cbranch_scc1 Lat_end")
    a.e("s_and_b32 s25, s2, 7")
    a.e("s_lshl_b32 s25, s25, 2")
    a.e("s_bfe_u32 s39, s2, 0x20003")
    a.e("s_add_u32 s25, s25, s39")
    a.e("s_lshr_b32 s26, s2, 5")
    a.e("s_sub_u32 s31, 15, s26")
    a.e("s_sub_u32 s32, 7, s24")
    a.e("s_cmp_lt_u32 s24, 4")
    a.e("s_cselect_b32 s31, s31, s26")
    a.e("s_cselect_b32 s32, s24, s32")
    a.e("s_lshl_b32 s27, s31, 2")
    a.e("s_add_u32 s27, s27, s32")
    a.e("s_lshr_b32 s28, s27, 1")
    a.e("v_bfe_u32 v14, v2, 2, 2")
    a.e("v_and_b32 v15, 3, v2")
    a.e("v_lshrrev_b32 v1, 4, v2")
    a.e("v_lshlrev_b32 v4, 4, v15")
    a.e("v_lshl_add_u32 v4, v1, 6, v4")
    a.e("v_lshl_add_u32 v3, v14, 13, v4")
    a.e(f"v_lshlrev_b32 v{VG}, 4, v2")
    a.e(f"v_add_u32 v{VG2}, 0x1000, v{VG}")
    a.e("s_mul_i32 s33, s27, 40960")
    a.e(f"s_add_u32 s33, s33, {WS_XN}")
    a.e("s_lshl_b32 s34, s24, 15")
    a.e("s_lshl_b32 s31, s25, 8")
    a.e("s_add_u32 s34, s34, s31")
    a.e("s_lshl_b32 s35, s24, 10")
    a.e("s_mov_b32 s38, 0")
    rot(a, 40, 45, "s34", 1 << 20, "s33", 0, "s38")
    a.e("s_lshr_b32 s39, s2, 3")
    a.e("s_cmp_ge_u32 s39, 22")
    a.e("s_waitcnt lgkmcnt(0)")
    a.e("s_cbranch_scc1 Lat_s5")
    def misc():
        a.e("v_lshrrev_b32 v1, 5, v2")
        a.e("v_lshlrev_b32 v4, 10, v1")
        a.e("v_lshl_add_u32 v4, v14, 6, v4")
        a.e("v_bfe_u32 v14, v2, 4, 1")
        a.e("v_lshl_add_u32 v4, v14, 5, v4")
        a.e("v_lshl_add_u32 v4, v15, 3, v4")
        a.e("v_add_u32 v5, 0x10000, v4")
        a.e("v_add_u32 v6, 0x20000, v4")
        a.e(f"v_add_u32 v{VB}, 0x10000, v{VG}")
        a.e("s_and_b32 s31, s32, 1")
        a.e("s_lshl_b32 s31, s31, 5")
        a.e(f"v_and_b32 v{VQ}, 31, v2")
        a.e(f"v_add_u32 v{VQ}, s31, v{VQ}")
        a.e(f"v_lshlrev_b32 v15, 2, v1")
        a.e(f"v_sub_u32 v{VQ}, v{VQ}, v15")
        a.e(f"v_mov_b32 v{VNEG}, {fx(-1e30)}")
        a.e("v_and_b32 v15, 15, v2")
        a.e("v_lshlrev_b32 v15, 4, v15")
        a.e("v_lshl_add_u32 v15, v14, 10, v15")
        a.e("v_lshl_add_u32 v1, v1, 8, v15")
        a.e("s_lshl_b32 s29, s25, 20")
        a.e("s_lshr_b32 s36, s27, 1")
        a.e("s_lshl_b32 s36, s36, 7")
        a.e("s_lshl_b32 s31, s25, 2")
        a.e("s_add_u32 s36, s36, s31")
        a.e("s_lshl_b32 s36, s36, 12")
        a.e("s_and_b32 s31, s27, 1")
        a.e("s_lshl_b32 s31, s31, 11")
        a.e("s_add_u32 s36, s36, s31")
        a.e(f"s_add_u32 s36, s36, {WS_CTX}")
        a.e("s_and_b32 s37, s24, 3")
        a.e("s_lshl_b32 s37, s37, 13")
        a.e("s_lshr_b32 s34, s37, 1")
    b1, b2, b3 = qbatch(a)
    for f in b1: f()
    rot(a, 40, 45, "s34", 1 << 20, "s33", 1, "s38")
    a.e("s_barrier")
    for f in b2: f()
    for f in b3: f()
    for p in range(2, 5): rot(a, 40, 45, "s34", 1 << 20, "s33", p, "s38")
    misc()
    canon = list(a.vm)
    a.label("Lat_join")
    a.e("s_cmp_ge_u32 s24, 4")
    a.e("s_cbranch_scc1 Lat_B")
    a.hist = []
    body(a, True, D)
    a.label("Lat_B")
    a.vm, a.lg = list(canon), []
    a.hist = []
    body(a, False, D)
    a.label("Lat_s5")
    a.vm, a.lg, a.hist = [], [], []
    X5 = [S_ + 32, NM, Q_]
    a.e("s_sub_u32 s60, s39, 22")
    a.e("s_and_b32 s61, s2, 7")
    a.e("s_lshl_b32 s61, s61, 1")
    a.e("s_sub_u32 s31, s60, 5")
    a.e("s_add_u32 s62, s61, 1")
    a.e("s_cmp_ge_u32 s60, 5")
    a.e("s_cselect_b32 s60, s31, s60")
    a.e("s_cselect_b32 s61, s62, s61")
    a.e("s_lshl_b32 s62, s61, 2")
    a.e("s_and_b32 s31, s24, 3")
    a.e("s_add_u32 s62, s62, s31")
    a.e("s_mul_i32 s63, s62, 40960")
    a.e(f"s_add_u32 s30, s63, {WS_HS}")
    a.e(f"s_mul_i32 s29, s24, {4*1280}")
    a.e("s_lshl_b32 s31, s60, 8")
    a.e("s_add_u32 s29, s29, s31")
    a.e("v_mul_u32_u24 v8, 1280, v14")
    a.e("v_add_u32 v8, v8, v4")
    a.e("s_mov_b32 s36, 0")
    rot(a, 50, 55, "s29", 128 * 1280, "s30", 0, "s36")
    def ldx5(st, i):
        r = X5[st % 3] + 4 * i
        a.vmem(f"buffer_load_dwordx4 v[{r}:{r+3}], v{VG if i < 4 else VG2}, s[8:11], s{55+st} offen offset:{(i%4)*1024}", ("X5", st, i // 4))
    def ldw5(st, g):
        a.e(f"s_add_u32 m0, s35, {qpos[st]*32768 + g*8192}")
        a.e(f"s_add_u32 s31, s{50+st}, {g*32*1280}")
        a.vmem(f"buffer_load_dwordx4 v8, s[12:15], s31 offen lds", ("W5", st, g // 2))
    for g in (0, 1): ldw5(0, g)
    for i in range(4): ldx5(0, i)
    rot(a, 50, 55, "s29", 128 * 1280, "s30", 1, "s36")
    a.e("s_barrier")
    for g in (2, 3): ldw5(0, g)
    for i in range(4, 8): ldx5(0, i)
    for g in range(4): ldw5(1, g)
    a.e("s_barrier")
    for i in range(8): ldx5(1, i)
    for p in range(2, 5): rot(a, 50, 55, "s29", 128 * 1280, "s30", p, "s36")
    for p in range(1, 5): rot(a, 40, 45, "s34", 1 << 20, "s33", p, "s38")
    misc()
    a.e("s_lshr_b32 s31, s24, 2")
    a.e("s_lshl_b32 s30, s31, 9")
    for r in (4, 5, 6): a.e(f"v_add_u32 v{r}, s30, v{r}")
    a.e("s_lshl_b32 s60, s60, 1")
    a.e("s_add_u32 s60, s60, s31")
    a.e("s_lshl_b32 s31, s60, 12")
    a.e("s_add_u32 s63, s63, s31")
    a.e(f"s_add_u32 s33, s63, {WS_XN}")
    a.e(f"s_add_u32 s63, s63, {WS_X1}")
    a.e(f"s_mul_i32 s62, s62, {32*80}")
    a.e("s_lshl_b32 s60, s60, 3")
    a.e("s_add_u32 s62, s62, s60")
    a.e(f"s_add_u32 s62, s62, {WS_ST1}")
    seq = [(st, ks, db) for st in range(5) for ks in range(8) for db in range(2)]
    DQ = 6
    def rd5(n):
        st, ks, db = seq[n]
        if db == 0 and (ks == 0 or (st == 0 and ks == 4)):
            a.wait_vm(("W5", st, 1 if (st or ks) else 0))
            a.e("s_barrier")
        f = FR + 4 * (n % NF)
        p = qpos[st]
        base = [4, 4, 5, 5, 6][p]
        off = (p % 2) * 32768 + ks * 4096 + db * 256
        a.ds(f"ds_read_b64_tr_b16 v[{f}:{f+1}], v{base} offset:{off}", ("F", n))
        a.ds(f"ds_read_b64_tr_b16 v[{f+2}:{f+3}], v{base} offset:{off+2048}", ("F", n))
    ev = {}
    def at(n, fn): ev.setdefault(n, []).append(fn)
    for st in range(2, 5):
        for g in range(4): at(16 * (st - 2) + 1 + g, (lambda st=st, g=g: ldw5(st, g)))
        for i in range(8): at(16 * (st - 2) + 5 + i, (lambda st=st, i=i: ldx5(st, i)))
    for i in range(4):
        at(45 + i, (lambda i=i: a.vmem(f"buffer_load_dwordx4 v[{240+4*i}:{243+4*i}], v{VG}, s[8:11], s33 offen offset:{i*1024}", "RES")))
    b1, b2, b3 = qbatch(a)
    for k, f in enumerate(b1 + b2 + b3): at(50 + k + k // 2, f)
    for n in range(DQ): rd5(n)
    for n, (st, ks, db) in enumerate(seq):
        for fn in ev.get(n, []): fn()
        if n + DQ < len(seq): rd5(n + DQ)
        if db == 0 and ks % 4 == 0: a.wait_vm(("X5", st, ks // 4))
        if db == 0 and ks == 0 and st % 2 == 0: stamp(a, 10 + st // 2)
        a.wait_lg(("F", n))
        d = S_ + 16 * db
        mf(a, d, FR + 4 * (n % NF), X5[st % 3] + 4 * ks, "0" if (st == 0 and ks == 0) else rng16(d))
    for r in (4, 5, 6): a.e(f"v_subrev_u32 v{r}, s30, v{r}")
    a.e("v_mov_b32 v8, 0xffff0000")
    a.e("v_and_b32 v9, 31, v2")
    a.e("v_mul_u32_u24 v9, 80, v9")
    a.wait_vm("RES")
    T = FR
    for i in range(16):
        a.e(f"v_lshlrev_b32 v{T+2*i}, 16, v{240+i}")
        a.e(f"v_and_b32 v{T+2*i+1}, v8, v{240+i}")
    for i in range(32): a.e(f"v_add_f32 v{S_+i}, v{S_+i}, v{T+i}")
    for i in range(16): a.e(f"v_cvt_pk_bf16_f32 v{240+i}, v{S_+2*i}, v{S_+2*i+1}")
    for i in range(4):
        a.e(f"buffer_store_dwordx4 v[{240+4*i}:{243+4*i}], v{VG}, s[8:11], s63 offen offset:{i*1024}{SC}")
    U = S_ + 32
    for k in range(2):
        a.e(f"v_add_f32 v{U+2*k}, v{S_+2*k}, v{S_+2*k+1}")
        a.e(f"v_mul_f32 v{U+2*k+1}, v{S_+2*k}, v{S_+2*k}")
        a.e(f"v_fmac_f32 v{U+2*k+1}, v{S_+2*k+1}, v{S_+2*k+1}")
    for i in range(4, 32):
        k = i & 1
        a.e(f"v_add_f32 v{U+2*k}, v{U+2*k}, v{S_+i}")
        a.e(f"v_fmac_f32 v{U+2*k+1}, v{S_+i}, v{S_+i}")
    a.e(f"v_add_f32 v{U}, v{U}, v{U+2}")
    a.e(f"v_add_f32 v{U+1}, v{U+1}, v{U+3}")
    a.e(f"v_mov_b32 v{U+2}, v{U}")
    a.e(f"v_mov_b32 v{U+3}, v{U+1}")
    a.e(f"v_permlane32_swap_b32 v{U+2}, v{U}")
    a.e(f"v_permlane32_swap_b32 v{U+3}, v{U+1}")
    a.e(f"v_add_f32 v{U}, v{U}, v{U+2}")
    a.e(f"v_add_f32 v{U+1}, v{U+1}, v{U+3}")
    a.e("s_mov_b32 exec_hi, 0")
    a.e(f"buffer_store_dwordx2 v[{U}:{U+1}], v9, s[8:11], s62 offen{SC}")
    a.e("s_mov_b64 exec, -1")
    assert a.vm[-len(canon):] == canon, (a.vm, canon)
    a.nop(2)
    a.e("s_branch Lat_join")
    a.label("Lat_end")
    a.e("s_endpgm")
    print("l2 auto nops:", a.nnop)
    return Kern("l2_kernel", grid, 512, 163840, a.text(), 256, 256, 100)

def body(a, isA, D):
    T = "A" if isA else "B"
    isB = not isA
    seq = [(st, ks, db) for st in range(5) for ks in range(8) for db in range(4)]
    DQ = 6
    def rdq(n):
        st, ks, db = seq[n]
        if db == 0 and (ks == 0 or (st == 0 and ks == 4)):
            a.wait_vm(("W", st, 1 if (st or ks) else 0))
            a.e("s_barrier")
            if st == 1 and isA:
                a.e("s_cmp_lt_u32 s39, 22")
                a.e("s_cbranch_scc1 Lat_nf")
                a.e("s_cmp_lg_u32 s24, 0")
                a.e("s_cbranch_scc1 Lat_nf")
                a.e("s_lshl_b32 s61, s61, 2")
                a.e("v_mov_b32 v8, 1")
                a.e("v_mov_b32 v9, 0")
                a.e("s_mov_b64 exec, 1")
                a.e("buffer_atomic_add v8, v9, s[16:19], s61 offen sc1")
                a.e("s_mov_b64 exec, -1")
                a.label("Lat_nf")
        f = FR + 4 * (n % NF)
        p = qpos[st]
        base = [4, 4, 5, 5, 6][p]
        off = (p % 2) * 32768 + ks * 4096 + db * 256
        a.ds(f"ds_read_b64_tr_b16 v[{f}:{f+1}], v{base} offset:{off}", ("F", n))
        a.ds(f"ds_read_b64_tr_b16 v[{f+2}:{f+3}], v{base} offset:{off+2048}", ("F", n))
    ev = {}
    def at(n, fn): ev.setdefault(n, []).append(fn)
    for i in range(8): at(i, (lambda i=i: ldx(a, 1, i)))
    for st in range(2, 5):
        for g in range(4): at(24 * (st - 2) + 9 + 2 * g, (lambda st=st, g=g: ldw(a, st, g)))
        for i in range(8): at(24 * (st - 2) + 17 + 2 * i, (lambda st=st, i=i: ldx(a, st, i)))
    def dma(tag, m0, goff, i, wsh):
        if i % 4 == 0:
            a.e(f"s_add_u32 m0, {wsh}, {m0 + (i//4)*4096}")
            a.e(f"s_add_u32 s31, s29, {goff + (i//4)*4096}")
            a.e(f"s_add_u32 s31, s31, {wsh}")
        a.vmem(f"buffer_load_dwordx4 v{VG}, s[8:11], s31 offen offset:{(i%4)*1024} lds", tag)
    if isB:
        for i in range(4): at(83 + 2 * i, (lambda i=i: dma(("KV", -1), 65536 + 16384, 0, i, "s34")))
        for i in range(8): at(93 + 2 * i, (lambda i=i: dma(("KV", 0), 0, 16384, i, "s37")))
        for i in range(8): at(125 + 2 * i, (lambda i=i: dma(("KV", 1), 32768, 16384 + 32768, i, "s37")))
    for i in range(16): at(100 + i, (lambda i=i: a.e(f"v_mov_b32 v{NM+i}, 0")))
    for i in range(32): at(66 + i, (lambda i=i: a.e(f"v_mov_b32 v{O_+32+i}, 0")))
    for n in range(DQ): rdq(n)
    for n, (st, ks, db) in enumerate(seq):
        for fn in ev.get(n, []): fn()
        if n + DQ < len(seq): rdq(n + DQ)
        if db == 0 and ks % 4 == 0: a.wait_vm(("X", st, ks // 4))
        if ks == 0 and db == 0: stamp(a, 1 + st)
        a.wait_lg(("F", n))
        f = FR + 4 * (n % NF)
        d = S_ + 16 * db
        mf(a, d, f, XB[st] + 4 * ks, "0" if (st == 0 and ks == 0) else rng16(d))
    stamp(a, 6)
    a.e("s_mov_b32 s38, 0x10000")
    if isB:
        a.e(f"s_add_u32 s29, s29, {16384 + 2*32768}")
        a.e(f"s_add_u32 s29, s29, s37")
        a.e("s_lshl_b32 s31, s26, 1")
        a.e("s_add_u32 s31, s31, s28")
        a.e("s_sub_u32 s52, 29, s31")
        a.wait_vm(("KV", -1))
    a.e("s_barrier")
    def rdK(n):
        f = FR + 4 * (n % NF)
        a.ds(f"ds_read_b128 v[{f}:{f+3}], v{VB} offset:{16384 + n*1024}", ("F", n % 32))
    def rdV(n):
        f = FR + 4 * (n % NF)
        ks, db = (n - 16) // 4, (n - 16) % 4
        a.ds(f"ds_read_b128 v[{f}:{f+3}], v{VB} offset:{(db*4+ks)*1024}", ("F", n % 32))
    def rdK2(n):
        f = FR + 4 * (n % NF)
        a.ds(f"ds_read_b128 v[{f}:{f+3}], v{VB} offset:{16384 + n*1024}", ("G", n))
    def slot_pre():
        if isB: a.e("s_add_u32 s30, s38, s37")
        a.e("s_add_u32 s38, s38, 0x8000")
        a.e("s_cmp_eq_u32 s38, 0x18000")
        a.e("s_cselect_b32 s38, 0, s38")
    def slot_post():
        a.e(f"v_add_u32 v{VB}, s38, v{VG}")
    def kvdma(i):
        if i % 4 == 0:
            a.e(f"s_add_u32 m0, s30, {(i//4)*4096}")
            if i: a.e(f"s_add_u32 s29, s29, 4096")
        a.vmem(f"buffer_load_dwordx4 v{VG}, s[8:11], s29 offen offset:{(i%4)*1024} lds", ("KV", "new"))
        if i == 7: a.e(f"s_add_u32 s29, s29, {32768-4096}")
    for n in range(D): rdK(n)
    if isB:
        a.e("s_and_b32 s61, s2, 7")
        a.e("s_lshl_b32 s61, s61, 1")
        a.e("s_sub_u32 s31, s39, 9")
        a.e("s_add_u32 s62, s61, 1")
        a.e("s_cmp_ge_u32 s39, 9")
        a.e("s_cselect_b32 s60, s31, s39")
        a.e("s_cselect_b32 s61, s62, s61")
        a.e("s_and_b32 s31, s24, 3")
        a.e("s_mul_i32 s53, s31, 3072")
        a.e(f"s_mul_i32 s54, s60, {240*1024}")
        a.e("s_add_u32 s54, s54, s53")
        a.e(f"s_add_u32 s54, s54, {WS_W3P}")
        a.e("s_add_u32 s53, s53, 0x18000")
        a.e("s_cmp_lt_u32 s39, 18")
        a.e("s_cselect_b64 exec, -1, 0")
    def w3dma(g, tag="W3"):
        a.e(f"s_add_u32 m0, s53, {(g%5)*12288}")
        a.e(f"s_add_u32 s31, s54, {g*12288}")
        for i in range(3):
            a.vmem(f"buffer_load_dwordx4 v{VG}, s[8:11], s31 offen offset:{i*1024} lds", tag)
    if isB:
        for g in range(4): w3dma(g)
        a.e("s_mov_b64 exec, -1")
    a.e(f"v_mov_b32 v{VT0}, {fx(LOG2E * 128 ** -0.5)}")
    for j in range(32):
        a.e(f"v_mul_f32 v{S_+2*j}, v{VT0}, v{S_+2*j}")
        a.e(f"v_mul_f32 v{S_+2*j+1}, v{VT0}, v{S_+2*j+1}")
        a.e(f"v_cvt_pk_bf16_f32 v{Q_+j}, v{S_+2*j}, v{S_+2*j+1}")
    a.e(f"v_mov_b32 v{VL0}, 0")
    a.e(f"v_mov_b32 v{VL1}, 0")
    def maskinit(buf):
        for r in range(32):
            c = 32 * (r // 16) + 8 * ((r % 16) // 4) + (r % 4)
            sp = 44 + 2 * (r % 4)
            a.e(f"v_cmp_le_i32 s[{sp}:{sp+1}], {c}, v{VQ}")
            if r >= 3:
                q = r - 3; sq = 44 + 2 * (q % 4)
                a.e(f"v_cndmask_b32 v{buf+q}, v{VNEG}, v{NM}, s[{sq}:{sq+1}]")
        for q in range(29, 32):
            sq = 44 + 2 * (q % 4)
            a.e(f"v_cndmask_b32 v{buf+q}, v{VNEG}, v{NM}, s[{sq}:{sq+1}]")
    def qk0(masked):
        for n in range(16):
            if n + D < 16: rdK(n + D)
            if n + D == 16:
                slot_pre()
                if isB: a.wait_vm(("KV", 0))
                a.e("s_barrier")
                slot_post()
            if n + D >= 16: rdK2(n + D - 16)
            a.e(f"v_mov_b32 v{O_+2*n}, 0")
            a.e(f"v_mov_b32 v{O_+2*n+1}, 0")
            a.wait_lg(("F", n))
            kb, ds_ = n // 8, n % 8
            d = S_ + 16 * kb
            mf(a, d, FR + 4 * (n % NF), Q_ + 4 * ds_, rng16(d) if (ds_ or masked) else rng16(NM))
    st0 = (list(a.vm), list(a.lg))
    if isB:
        a.e("s_cmp_lg_u32 s28, 0")
        a.e(f"s_cbranch_scc1 Lat{T}_q0")
        maskinit(S_)
        qk0(True)
        a.e(f"s_branch Lat{T}_q1")
        a.label(f"Lat{T}_q0")
        a.vm, a.lg = list(st0[0]), list(st0[1])
    qk0(False)
    a.label(f"Lat{T}_q1")
    a.nop(12)
    def maxops(buf):
        ops = [f"v_max3_f32 v{VMX}, v{buf}, v{buf+1}, v{buf+2}"]
        for k in range(14):
            ops.append(f"v_max3_f32 v{VMX}, v{VMX}, v{buf+3+2*k}, v{buf+4+2*k}")
        ops.append(f"v_max_f32 v{VMX}, v{VMX}, v{buf+31}")
        return ops
    for o in maxops(S_): a.e(o)
    a.e(f"v_mov_b32 v{VT0}, v{VMX}")
    a.e(f"v_permlane32_swap_b32 v{VT0}, v{VMX}")
    a.e(f"v_max_f32 v{VMX}, v{VMX}, v{VT0}")
    for i in range(16): a.e(f"v_sub_f32 v{NM+i}, 0, v{VMX}")
    for i in range(32): a.e(f"v_sub_f32 v{S_+i}, v{S_+i}, v{VMX}")
    if isA and PRIO: a.e(f"s_setprio {PRIO}")
    def entry_state():
        a.lg = [("F", n) for n in range(D)]
        a.vm = [("KV", "next")] * 8 if isB else []
        a.hist = []
    resc = []
    def step(par, masked):
        cur, nxt = S_ + 32 * par, S_ + 32 * (1 - par)
        if masked: maskinit(nxt)
        slots = [[] for _ in range(32)]
        cost = [4 if s % 2 == 0 else 0 for s in range(32)]
        cost[24] += 12; cost[25] += 8; cost[28] += 4; cost[0] += 12
        eslot = {}
        e = 0
        for s in range(32):
            tgt = min(32, -(-32 * (s + 1) // 26))
            while e < tgt:
                slots[s].append(("E", e)); cost[s] += 8; eslot[e] = s; e += 1
        for j in range(16):
            s = eslot[2 * j + 1] + 1
            slots[s].append(("C", j)); cost[s] += 4
        mo = maxops(nxt)
        ms = list(range(10, 17)) + list(range(18, 27))
        for k, o in enumerate(mo):
            slots[ms[k]].append(("M", o)); cost[ms[k]] += 4
        if isB:
            for i in range(8): cost[1 + 2 * i] += 6
        e = 0
        rem = sum(cost) + 32 * 4
        for s in range(32):
            tgt = rem / (32 - s)
            while e < 32 and eslot[e] < s and (cost[s] + 4 <= tgt + 2 or s == 31):
                slots[s].append(("A", e)); cost[s] += 4; e += 1
            rem -= cost[s]
        assert e == 32
        for n in range(32):
            m = n + D
            if m == 31: slot_pre()
            if m < 16: rdK(m)
            elif m < 32: rdV(m)
            else:
                if m == 32:
                    if isB: a.wait_vm(("KV", "next"))
                    a.e("s_barrier")
                    slot_post()
                if not masked: rdK2(m - 32)
            if isB and n % 2 == 1 and n < 16: kvdma(n // 2)
            for k, x in slots[n]:
                if k == "E": a.e(f"v_exp_f32 v{cur+x}, v{cur+x}")
                elif k == "C": a.e(f"v_cvt_pk_bf16_f32 v{P_+x}, v{cur+2*x}, v{cur+2*x+1}")
                elif k == "M": a.e(x)
                else:
                    l = VL0 if x % 2 == 0 else VL1
                    a.e(f"v_add_f32 v{l}, v{l}, v{cur+x}")
            if n == 28: a.e(f"v_cmp_lt_f32 vcc, {fx(THR)}, v{VMX}")
            if n % 2 == 0: a.wait_lg([("F", n), ("F", n + 1)])
            f = FR + 4 * (n % NF)
            if n < 16:
                kb, ds_ = n // 8, n % 8
                d = nxt + 16 * kb
                mf(a, d, f, Q_ + 4 * ds_, rng16(d) if (ds_ or masked) else rng16(NM))
            else:
                ks, db = (n - 16) // 4, (n - 16) % 4
                d = O_ + 16 * db
                mf(a, d, f, P_ + 4 * ks, rng16(d))
        lab = a.newlabel(f"Lat{T}_rs")
        a.e(f"s_cbranch_vccnz {lab}")
        a.label(lab + "r")
        resc.append((lab, nxt))
    def final(par, barrier):
        cur = S_ + 32 * par
        a.lg = []; a.hist = []
        a.vm = [("KV", "next")] * 8 if isB else []
        for m in range(16, 16 + D): rdV(m)
        def grp(g):
            ops = []
            for e in range(8 * g, 8 * g + 8):
                ops.append(f"v_exp_f32 v{cur+e}, v{cur+e}")
            for j in range(4 * g, 4 * g + 4):
                ops.append(f"v_cvt_pk_bf16_f32 v{P_+j}, v{cur+2*j}, v{cur+2*j+1}")
            return ops
        def adds(g):
            return [f"v_add_f32 v{VL0 if e%2==0 else VL1}, v{VL0 if e%2==0 else VL1}, v{cur+e}" for e in range(8 * g, 8 * g + 8)]
        for o in grp(0): a.e(o)
        for n in range(16, 32):
            g = (n - 16) // 4
            if n + D < 32: rdV(n + D)
            if isB and n < 24: kvdma(n - 16)
            if n + D == 32 and barrier:
                if isB:
                    slot_pre()
                    a.wait_vm(("KV", "next"))
                a.e("s_barrier")
            a.wait_lg(("F", n))
            ks, db = (n - 16) // 4, (n - 16) % 4
            d = O_ + 16 * db
            mf(a, d, FR + 4 * (n % NF), P_ + 4 * ks, rng16(d))
            ops = (grp(g + 1) if g < 3 else []) + adds(g)
            k = (n - 16) % 4
            w = -(-len(ops) // 4)
            for o in ops[k * w:(k + 1) * w]: a.e(o)
        a.e(f"s_branch Lat{T}_epi")
    stamp(a, 7)
    if isB:
        a.e("s_cmp_eq_u32 s28, 0")
        a.e(f"s_cbranch_scc1 Lat{T}_f0")
    a.label(f"Lat{T}_loop")
    a.e("s_cmp_eq_u32 s28, 1")
    a.e(f"s_cbranch_scc1 Lat{T}_m0")
    entry_state()
    step(0, False)
    a.e("s_cmp_eq_u32 s28, 2")
    a.e(f"s_cbranch_scc1 Lat{T}_m1")
    entry_state()
    step(1, False)
    a.e("s_sub_u32 s28, s28, 2")
    a.e(f"s_branch Lat{T}_loop")
    a.label(f"Lat{T}_m0")
    stamp(a, 8)
    entry_state()
    step(0, True)
    final(1, isB)
    a.label(f"Lat{T}_m1")
    stamp(a, 8)
    entry_state()
    step(1, True)
    a.label(f"Lat{T}_f0")
    final(0, True)
    for lab, nxt in resc:
        a.label(lab)
        a.hist = []
        a.e(f"v_mov_b32 v{VT0}, v{VMX}")
        a.e(f"v_permlane32_swap_b32 v{VT0}, v{VMX}")
        a.e(f"v_max3_f32 v{VMX}, v{VMX}, v{VT0}, 0")
        a.e(f"v_sub_f32 v{VT0}, 0, v{VMX}")
        a.e(f"v_exp_f32 v{VT0}, v{VT0}")
        for i in range(16): a.e(f"v_sub_f32 v{NM+i}, v{NM+i}, v{VMX}")
        for i in range(32): a.e(f"v_sub_f32 v{nxt+i}, v{nxt+i}, v{VMX}")
        a.e(f"v_mul_f32 v{VL0}, v{VL0}, v{VT0}")
        a.e(f"v_mul_f32 v{VL1}, v{VL1}, v{VT0}")
        for i in range(64): a.e(f"v_mul_f32 v{O_+i}, v{O_+i}, v{VT0}")
        a.nop(2)
        a.e(f"s_branch {lab}r")
    a.label(f"Lat{T}_epi")
    a.hist = []; a.lg = []
    a.vm = [("KV", "next")] * 8 if isB else []
    stamp(a, 9)
    def kvblock():
        a.e("s_cmp_gt_i32 s52, 0")
        a.e("s_cselect_b64 exec, -1, 0")
        a.e("s_sub_u32 s52, s52, 1")
        for i in range(8): kvdma(i)
        a.e("s_mov_b64 exec, -1")
    def endper(extra=()):
        slot_pre()
        a.wait_vm([("KV", "next")] + list(extra))
        a.e("s_barrier")
        a.vm = [("KV", "next") if t == ("KV", "new") else t for t in a.vm]
    if isB:
        a.e("s_lshl_b32 s59, s61, 2")
        a.e("v_mov_b32 v6, 0")
        a.vmem("buffer_load_dword v5, v6, s[16:19], s59 offen sc1", "FL")
        kvblock()
    a.e(f"v_add_f32 v{VL0}, v{VL0}, v{VL1}")
    a.e(f"v_mov_b32 v{VT0}, v{VL0}")
    a.e(f"v_permlane32_swap_b32 v{VT0}, v{VL0}")
    a.e(f"v_add_f32 v{VL0}, v{VL0}, v{VT0}")
    a.e(f"v_rcp_f32 v{VL0}, v{VL0}")
    a.nop(4)
    for db in range(4):
        for j in range(8):
            r = O_ + 16 * db + 2 * j
            a.e(f"v_mul_f32 v{r}, v{r}, v{VL0}")
            a.e(f"v_mul_f32 v{r+1}, v{r+1}, v{VL0}")
            a.e(f"v_cvt_pk_bf16_f32 v{S_+8*db+j}, v{r}, v{r+1}")
        for rh in range(2):
            r = S_ + 8 * db + 4 * rh
            a.vmem(f"buffer_store_dwordx4 v[{r}:{r+3}], v1, s[8:11], s36 offen offset:{rh*512}", "ST")
        if db < 3: a.e("s_add_u32 s36, s36, 4096")
    if isA:
        stamp_store(a, 5)
        a.e("s_endpgm")
        return
    a.e("s_cmp_ge_u32 s39, 18")
    a.e("s_cbranch_scc1 LatB_ldt")
    sv = list(a.vm)
    ACC, XR, NX, CS = 16, 112, 12, 160
    a.e("s_lshl_b32 s62, s61, 2")
    a.e("s_and_b32 s31, s24, 3")
    a.e("s_add_u32 s62, s62, s31")
    a.e("s_mul_i32 s55, s62, 40960")
    a.e(f"s_add_u32 s55, s55, {WS_X1}")
    a.e(f"s_mul_i32 s56, s62, {32*80}")
    a.e(f"s_add_u32 s56, s56, {WS_ST1}")
    a.e("s_mul_i32 s57, s60, 768")
    a.e(f"s_add_u32 s57, s57, {WS_CS3}")
    a.e("s_lshr_b32 s58, s62, 1")
    a.e("s_mul_i32 s58, s58, 54")
    a.e("s_mul_i32 s31, s60, 6")
    a.e("s_add_u32 s58, s58, s31")
    a.e("s_lshl_b32 s58, s58, 12")
    a.e("s_and_b32 s31, s62, 1")
    a.e("s_lshl_b32 s31, s31, 11")
    a.e("s_add_u32 s58, s58, s31")
    a.e(f"s_add_u32 s58, s58, {WS_H3}")
    a.e("v_and_b32 v3, 31, v2")
    a.e("v_mul_u32_u24 v3, 80, v3")
    a.e("v_lshrrev_b32 v4, 5, v2")
    a.e("v_lshlrev_b32 v4, 4, v4")
    a.e(f"v_add_u32 v{VB}, 0x18000, v{VG}")
    a.wait_vm("FL")
    spin_wait(a, "LatB_w", 5, 6, 16, "s59", 5, cnt="s62")
    def ldx6(s):
        r = XR + 4 * (s % NX)
        if s % 8 == 0 and s: a.e("s_add_u32 s55, s55, 8192")
        a.vmem(f"buffer_load_dwordx4 v[{r}:{r+3}], v{VG if s % 8 < 4 else VG2}, s[8:11], s55 offen offset:{(s%4)*1024} sc1", ("X6", s))
    for s in range(4): ldx6(s)
    for i in range(5):
        a.vmem(f"buffer_load_dwordx4 v[{CS+4*i}:{CS+4*i+3}], v3, s[8:11], s56 offen offset:{i*16} sc1", "S6")
    for s in range(4, NX): ldx6(s)
    endper()
    a.e("s_bitcmp1_b32 s27, 1")
    a.e("s_cbranch_scc1 LatB_odd")
    sv2 = list(a.vm)
    kvblock()
    endper()
    a.label("LatB_odd")
    a.vm = [t for t in sv2 if t != ("KV", "next")]
    first = True
    stamp(a, 10)
    NM6 = 240
    D6 = 6
    def csreg(k): return (XR + 4 * k) if k < 12 else (CS + 4 * (k - 12))
    def ldcs(k):
        r = csreg(k)
        a.vmem(f"buffer_load_dwordx4 v[{r}:{r+3}], v4, s[8:11], s57 offen offset:{k*32}", ("CS", k // 4))
    def rd6(n):
        g, o = n // 12, n % 12
        f = FR + 4 * (n % NF)
        a.ds(f"ds_read_b128 v[{f}:{f+3}], v{VB} offset:{(g%5)*12288 + o*1024}", ("F", n))
    stat = []
    for i in range(1, 10):
        stat += [f"v_add_f32 v{CS}, v{CS}, v{CS+2*i}", f"v_add_f32 v{CS+1}, v{CS+1}, v{CS+2*i+1}"]
    stat += [f"v_mul_f32 v240, {fx(1/640)}, v{CS}", f"v_mul_f32 v241, {fx(1/640)}, v{CS+1}", "v_fma_f32 v241, -v240, v240, v241",
             "v_max_f32 v241, 0, v241", f"v_add_f32 v241, {fx(1e-5)}, v241", "v_rsq_f32 v241, v241", f"v_mov_b32 v242, {fx(GC2)}"]
    kvblock()
    for n in range(D6): rd6(n)
    for n in range(NM6):
        ks, jb = n // 6, n % 6
        m = n + D6
        if m < NM6:
            if m % 12 == 0:
                g = m // 12
                if first:
                    a.vm = [("KV", "next") if k < len(a.vm) - 1 and a.vm[k + 1] == ("KV", "new") and t != ("KV", "new") else t for k, t in enumerate(a.vm)]
                    first = False
                endper([("W3", g)])
                kvblock()
                if g + 3 < 20: w3dma(g + 3, ("W3", g + 3))
            rd6(m)
        if n == 24: a.wait_vm("S6")
        if 24 <= n < 24 + 13:
            for o in stat[2 * (n - 24):2 * (n - 24) + 2]: a.e(o)
        if 48 <= n < 60: ldcs(12 + n - 48)
        if jb == 0: a.wait_vm(("X6", ks))
        a.wait_lg(("F", n))
        d = ACC + 16 * jb
        mf(a, d, FR + 4 * (n % NF), XR + 4 * (ks % NX), "0" if ks == 0 else rng16(d))
        if jb == 5:
            if ks + NX < 40: ldx6(ks + NX)
            else: ldcs(ks % NX)
    stamp(a, 11)
    for q, jb in enumerate([3, 4, 5, 1, 2, 0]):
        endper()
        kvblock()
        a.wait_vm(("CS", jb))
        d = ACC + 16 * jb
        c = csreg(4 * jb)
        for i in range(16): a.e(f"v_fma_f32 v{d+i}, -v240, v{c+i}, v{d+i}")
        for i in range(16): a.e(f"v_mul_f32 v{d+i}, v{d+i}, v241")
        for l in interleave([gelu_ops(d + i, FR + i, 242) for i in range(16)]): a.e(l)
        for i in range(8): a.e(f"v_cvt_pk_bf16_f32 v{d+i}, v{d+2*i}, v{d+2*i+1}")
        a.e(f"s_add_u32 s31, s58, {jb*4096}")
        for rh in range(2):
            a.vmem(f"buffer_store_dwordx4 v[{d+4*rh}:{d+4*rh+3}], v1, s[8:11], s31 offen offset:{rh*512}", "ST")
    stamp(a, 12)
    a.e("s_waitcnt vmcnt(10)")
    a.label("LatB_ldt")
    a.hist = []
    slot_pre()
    a.e("s_waitcnt vmcnt(16)")
    a.e("s_barrier")
    a.label("LatB_ld")
    a.e("s_cmp_le_i32 s52, 0")
    a.e("s_cbranch_scc1 LatB_fin")
    a.e("s_sub_u32 s52, s52, 1")
    for i in range(8): kvdma(i)
    slot_pre()
    a.e("s_waitcnt vmcnt(8)")
    a.e("s_barrier")
    a.e("s_branch LatB_ld")
    a.label("LatB_fin")
    a.e("s_waitcnt vmcnt(0)")
    stamp_store(a, 5)
    a.e("s_endpgm")
```

```python
from common import *

def spin_wait(a, name, vreg, voff, srd, soff, target, barrier=False, cnt="s62"):
    a.e(f"v_readfirstlane_b32 s63, v{vreg}")
    a.e(f"s_cmp_ge_u32 s63, {target}")
    a.e(f"s_cbranch_scc1 {name}_ok")
    a.e(f"s_mov_b32 {cnt}, 8000")
    a.label(f"{name}_sp")
    if barrier: a.e("s_barrier")
    a.e("s_sleep 16")
    a.e(f"buffer_load_dword v{vreg}, v{voff}, s[{srd}:{srd+3}], {soff} offen sc1")
    a.e("s_waitcnt vmcnt(0)")
    a.e(f"v_readfirstlane_b32 s63, v{vreg}")
    a.e(f"s_cmp_ge_u32 s63, {target}")
    a.e(f"s_cbranch_scc1 {name}_ok")
    a.e(f"s_sub_u32 {cnt}, {cnt}, 1")
    a.e(f"s_cmp_lg_u32 {cnt}, 0")
    a.e(f"s_cbranch_scc1 {name}_sp")
    a.label(f"{name}_ok")

def l1_kernel():
    a = Asm()
    a.auto = True
    grid = 256
    SC = " sc1"
    FL = os.environ.get("FL", "")
    NW = " nt" if "w" in FL else ""
    NP = " nt" if "p" in FL else ""
    TQN = int(os.environ.get("TQN", 60)); TPN = int(os.environ.get("TPN", 76))
    SK = os.environ.get("SK", " sc1")
    stamp_init(a)
    load_srds(a, [(20, "x"), (4, "ckv"), (8, "ws"), (12, "wuk"), (16, "wuv"), (36, "dbg"), (40, "w1"), (44, "wo"), (48, "w4"), (52, "w3")])
    a.e(f"s_load_dwordx2 s[96:97], s[0:1], {KA['wq']}")
    a.e(f"s_load_dwordx2 s[98:99], s[0:1], {KA['w2']}")
    a.e("v_lshrrev_b32 v6, 6, v0")
    a.e("v_and_b32 v7, 63, v0")
    a.e("v_readfirstlane_b32 s24, v6")
    a.e(f"s_cmp_ge_u32 s2, {grid}")
    a.e("s_cbranch_scc1 Ll1_end")
    a.e("v_and_b32 v56, 7, v7")
    a.e("v_bfe_u32 v57, v7, 3, 2")
    a.e("v_lshrrev_b32 v58, 5, v7")
    a.e("v_mul_u32_u24 v59, 1280, v56")
    a.e("v_lshl_add_u32 v59, v57, 5, v59")
    a.e("v_lshl_add_u32 v59, v58, 4, v59")
    a.e("s_mul_i32 s27, s2, 10240")
    a.e("s_lshl_b32 s28, s24, 8")
    a.e("s_add_u32 s27, s27, s28")
    a.e("s_cmp_lt_u32 s24, 5")
    a.e("s_cselect_b64 s[56:57], -1, 0")
    a.e("s_and_b32 s25, s2, 7")
    a.e("s_lshl_b32 s25, s25, 2")
    a.e("s_bfe_u32 s28, s2, 0x20003")
    a.e("s_add_u32 s25, s25, s28")
    a.e("s_lshr_b32 s26, s2, 5")
    TMP = 96
    a.e(f"v_lshrrev_b32 v6, 3, v7")
    a.e(f"v_and_b32 v5, 7, v7")
    a.e(f"v_lshrrev_b32 v4, 1, v6")
    a.e(f"v_xor_b32 v5, v5, v4")
    a.e(f"v_lshlrev_b32 v6, 10, v6")
    a.e(f"v_lshl_add_u32 v{TMP}, v5, 4, v6")
    a.e(f"v_xor_b32 v{TMP+1}, 64, v{TMP}")
    a.e("v_lshrrev_b32 v108, 3, v7")
    a.e("v_lshlrev_b32 v108, 7, v108")
    a.e("v_lshl_add_u32 v108, v56, 10, v108")
    a.e("s_lshl_b32 s28, s28, 13")
    a.e("v_add_u32 v108, s28, v108")
    a.e("v_lshrrev_b32 v109, 2, v7")
    a.e("v_lshlrev_b32 v109, 20, v109")
    a.e("v_bfe_u32 v110, v7, 1, 1")
    a.e("v_lshl_add_u32 v109, v110, 13, v109")
    a.e("v_and_b32 v110, 1, v7")
    a.e("v_lshl_add_u32 v109, v110, 7, v109")
    a.e("s_lshl_b32 s60, s26, 3")
    a.e("s_add_u32 s60, s60, s24")
    a.e("s_lshl_b32 s60, s60, 14")
    a.e("s_lshl_b32 s28, s25, 8")
    a.e("s_add_u32 s60, s60, s28")
    a.e("s_lshl_b32 s28, s26, 18")
    a.e("s_lshl_b32 s29, s24, 15")
    a.e("s_add_u32 s28, s28, s29")
    a.e("s_lshl_b32 s29, s24, 12")
    def tch(lo, hi, voff, srd, soff, dst=110):
        m = ((1 << hi) - 1) ^ ((1 << lo) - 1)
        a.e(f"s_mov_b32 exec_lo, {hex(m & 0xffffffff)}")
        a.e(f"s_mov_b32 exec_hi, {hex(m >> 32)}")
        a.vmem(f"buffer_load_dword v{dst}, v{voff}, s[{srd}:{srd+3}], {soff} offen{NW if srd in (12, 16) else ''}", "T")
        a.e("s_mov_b64 exec, -1")
    def tA(c0, c1): tch(8 * c0, 8 * c1, 108, 4, "s28")
    def tW(j0, j1): tch(4 * (j0 % 4), 4 * (j0 % 4 + j1 - j0), 109, 12 if j0 < 4 else 16, "s60")
    a.e("s_waitcnt lgkmcnt(0)")
    a.e("s_mov_b64 exec, s[56:57]")
    a.vmem(f"buffer_load_dwordx4 v[32:35], v59, s[20:23], s27 offen{NP}", "LX")
    a.vmem(f"buffer_load_dwordx4 v[36:39], v59, s[20:23], s27 offen offset:128{NP}", "LX")
    tA(0, 2); tW(0, 1)
    a.e("s_barrier")
    def dmaA(c, slot, i):
        a.e(f"s_add_u32 m0, s29, {slot*32768 + i*1024}")
        a.e(f"s_add_u32 s33, s28, {i*8192 + c*128}")
        a.vmem(f"buffer_load_dwordx4 v{TMP+(i&1)}, s[4:7], s33 offen lds", ("A", c))
    def dmaW(j, slot, i):
        a.e(f"s_add_u32 m0, s29, {slot*32768 + i*1024}")
        if j < 4:
            a.e(f"s_add_u32 s33, s30, {(j*128 + 4*i)*8192}")
            a.vmem(f"buffer_load_dwordx4 v1, s[12:15], s33 offen{NW} lds", ("W", j))
        else:
            ch, kk = (j - 4) >> 1, (j - 4) & 1
            a.e(f"s_add_u32 s33, s30, {(kk*256 + 4*i)*8192 + ch*128}")
            a.vmem(f"buffer_load_dwordx4 v2, s[16:19], s33 offen{NW} lds", ("W", j))
    for i in range(4): dmaA(0, 3, i)
    a.e("v_bfe_u32 v4, v7, 2, 2")
    a.e("v_and_b32 v5, 3, v7")
    a.e("v_lshlrev_b32 v6, 13, v4")
    a.e("v_lshl_add_u32 v6, v5, 4, v6")
    a.e("v_lshrrev_b32 v3, 4, v7")
    a.e("v_lshl_add_u32 v1, v3, 6, v6")
    a.e("v_bfe_u32 v3, v7, 4, 1")
    a.e("v_lshl_add_u32 v2, v3, 6, v6")
    a.e("v_lshrrev_b32 v6, 5, v7")
    a.e("v_lshl_add_u32 v2, v6, 20, v2")
    a.e("s_lshl_b32 s30, s24, 17")
    a.e("s_lshl_b32 s27, s25, 8")
    a.e("s_add_u32 s30, s30, s27")
    for i in range(4): dmaW(0, 2, i)
    a.e("s_barrier")
    for i in range(4): dmaA(1, 0, i)
    a.e("v_lshlrev_b32 v3, 5, v3")
    a.e("v_lshl_add_u32 v3, v6, 11, v3")
    a.e("v_lshl_add_u32 v3, v4, 6, v3")
    a.e("v_lshl_add_u32 v3, v5, 3, v3")
    AR = TMP + 2
    a.e(f"v_and_b32 v4, 31, v7")
    a.e(f"v_bfe_u32 v5, v7, 1, 3")
    a.e(f"v_xor_b32 v5, v5, v6")
    a.e(f"v_lshlrev_b32 v5, 4, v5")
    a.e(f"v_lshl_add_u32 v5, v4, 7, v5")
    a.e(f"v_add_u32 v5, s29, v5")
    for k4 in range(4):
        a.e(f"v_xor_b32 v{AR+k4}, {k4*32}, v5")
        a.e(f"v_add_u32 v{AR+4+k4}, 0x18000, v{AR+k4}")
    a.e("v_add_u32 v4, 0x10000, v3")
    a.e("v_add_u32 v5, 0x20000, v3")
    a.e("v_lshlrev_b32 v0, 4, v7")
    a.e("s_lshl_b32 s34, s25, 20")
    a.e("s_lshl_b32 s27, s26, 17")
    a.e("s_add_u32 s34, s34, s27")
    a.e("s_lshr_b32 s27, s24, 1")
    a.e("s_lshl_b32 s27, s27, 15")
    a.e("s_add_u32 s34, s34, s27")
    a.e("s_and_b32 s27, s24, 1")
    a.e("s_lshl_b32 s35, s27, 11")
    a.e("s_add_u32 s35, s35, s34")
    a.e("s_add_u32 s35, s35, 16384")
    a.e("s_lshl_b32 s27, s27, 13")
    a.e("s_add_u32 s34, s34, s27")
    a.e("v_lshrrev_b32 v60, 3, v7")
    a.e("v_lshlrev_b32 v60, 12, v60")
    a.e("v_lshl_add_u32 v60, v56, 6, v60")
    a.e("s_lshl_b32 s27, s24, 3")
    a.e("s_add_u32 s27, s27, 0x20000")
    a.e("v_add_u32 v60, s27, v60")
    a.e("s_add_u32 s27, s29, 0x20000")
    a.e("v_lshlrev_b32 v61, 6, v56")
    a.e("v_add_u32 v61, s27, v61")
    a.e("v_lshlrev_b32 v62, 10, v57")
    a.e("v_lshl_add_u32 v62, v58, 9, v62")
    a.e("v_lshl_add_u32 v62, v56, 4, v62")
    a.e("s_and_b32 s27, s2, 3")
    a.e("s_lshl_b32 s27, s27, 7")
    a.e("v_add_u32 v62, s27, v62")
    a.e("s_lshr_b32 s27, s2, 2")
    a.e("s_mul_i32 s27, s27, 40960")
    a.e("s_lshl_b32 s31, s24, 13")
    a.e("s_add_u32 s27, s27, s31")
    a.e("s_mov_b32 s58, 0x3f803f80")
    a.e("v_mov_b32 v63, 0xffff0000")
    a.wait_vm("LX")
    stamp(a, 10)
    tA(2, 4); tW(1, 2)
    a.e("s_mov_b64 exec, s[56:57]")
    def ln(rnd, dst, wsoff):
        S, Q, T = 64, 65, 66
        for i in range(8):
            a.e(f"v_dot2_f32_bf16 v{S}, v{32+i}, s58, {'0' if i==0 else 'v%d'%S}")
            a.e(f"v_dot2_f32_bf16 v{Q}, v{32+i}, v{32+i}, {'0' if i==0 else 'v%d'%Q}")
        for i in range(4):
            a.e(f"v_lshlrev_b32 v{40+2*i}, 16, v{32+i}")
            a.e(f"v_and_b32 v{41+2*i}, v63, v{32+i}")
        a.e(f"v_add_f32_dpp v{S}, v{S}, v{S} row_ror:8 row_mask:0xf bank_mask:0xf")
        a.e(f"v_add_f32_dpp v{Q}, v{Q}, v{Q} row_ror:8 row_mask:0xf bank_mask:0xf")
        for pl in ("16", "32"):
            a.e(f"v_mov_b32 v{T}, v{S}")
            a.e(f"v_mov_b32 v{T+1}, v{Q}")
            a.e(f"v_permlane{pl}_swap_b32 v{T}, v{S}")
            a.e(f"v_permlane{pl}_swap_b32 v{T+1}, v{Q}")
            a.e(f"v_add_f32 v{S}, v{S}, v{T}")
            a.e(f"v_add_f32 v{Q}, v{Q}, v{T+1}")
        a.e(f"ds_write_b64 v60, v[{S}:{Q}] offset:{rnd*512}")
        for i in range(4, 8):
            a.e(f"v_lshlrev_b32 v{40+2*i}, 16, v{32+i}")
            a.e(f"v_and_b32 v{41+2*i}, v63, v{32+i}")
        a.e("s_waitcnt lgkmcnt(0)")
        a.e("s_barrier")
        a.e(f"ds_read_b128 v[68:71], v61 offset:{rnd*512}")
        a.e(f"ds_read_b128 v[72:75], v61 offset:{rnd*512+16}")
        a.e(f"ds_read_b64 v[76:77], v61 offset:{rnd*512+32}")
        a.e("s_waitcnt lgkmcnt(0)")
        for k in range(2):
            a.e(f"v_add_f32 v{68+k}, v{68+k}, v{70+k}")
            a.e(f"v_add_f32 v{72+k}, v{72+k}, v{74+k}")
        for k in range(2):
            a.e(f"v_add_f32 v{68+k}, v{68+k}, v{72+k}")
            a.e(f"v_add_f32 v{68+k}, v{68+k}, v{76+k}")
        a.e(f"v_mul_f32 v68, {fx(1/640)}, v68")
        a.e(f"v_mul_f32 v69, {fx(1/640)}, v69")
        a.e("v_fma_f32 v69, -v68, v68, v69")
        a.e("v_max_f32 v69, 0, v69")
        a.e(f"v_add_f32 v70, {fx(1e-5)}, v69")
        a.e("v_rcp_f32 v71, v70")
        a.e("v_rsq_f32 v70, v70")
        a.e("v_lshlrev_b32 v72, 2, v56")
        a.e(f"v_fmaak_f32 v71, v71, v69, {fx(1e-5)}")
        a.e("v_mov_b32 v69, v70")
        a.e("v_rsq_f32 v71, v71")
        a.e("v_mul_f32 v68, v68, v69")
        for i in range(16): a.e(f"v_fma_f32 v{40+i}, v{40+i}, v69, -v68")
        for i in range(8):
            a.e(f"v_cvt_pk_bf16_f32 v{dst+i}, v{40+2*i}, v{41+2*i}")
        for h in range(2):
            a.e(f"v_permlane32_swap_b32 v{dst+4*h}, v{dst+4*h+2}")
            a.e(f"v_permlane32_swap_b32 v{dst+4*h+1}, v{dst+4*h+3}")
        for h in range(2):
            a.e(f"s_add_u32 s31, s27, {wsoff + 4096*h}")
            a.vmem(f"buffer_store_dwordx4 v[{dst+4*h}:{dst+4*h+3}], v62, s[8:11], s31 offen{SC}", "LS")
    ln(0, 80, WS_XN)
    a.e("s_cmp_eq_u32 s24, 0")
    a.e("s_cselect_b32 exec_lo, 0xff, 0")
    a.e("s_mov_b32 exec_hi, 0")
    a.e("s_lshl_b32 s31, s2, 5")
    a.e(f"s_add_u32 s31, s31, {WS_XN2}")
    a.vmem(f"buffer_store_dword v71, v72, s[8:11], s31 offen{SC}", "LS")
    a.e("s_mov_b64 exec, -1")
    stamp(a, 11)
    def rdA(c, slot, k4):
        s = 4 * c + k4
        if slot == 2:
            r, off = 111 + k4, 0
            a.e(f"v_add_u32 v{r}, 0x10000, v{AR+k4}")
        elif slot < 3: r, off = AR + k4, slot * 32768
        else: r, off = AR + 4 + k4, (slot - 3) * 32768
        a.ds(f"ds_read_b128 a[{4*s}:{4*s+3}], v{r} offset:{off}", ("RA", c))
    a.wait_vm(("A", 0))
    for k4 in range(4): rdA(0, 3, k4)
    a.wait_vm(("A", 1))
    for k4 in range(4): rdA(1, 0, k4)
    wslot = {0: 2, 1: 3, 2: 4, 3: 0, 4: 1, 5: 2, 6: 3, 7: 4}
    FR, NF, D = 8, 6, 5
    KACC, V1, V2 = 32, 96, 32
    seq = []
    for j in range(4):
        for ks in range(8):
            for db in range(4): seq.append((j, ks, db))
    for j in range(4, 8):
        for ks in range(16):
            for db in range(2): seq.append((j, ks, db))
    NG = len(seq)
    def rd(n):
        f = FR + 4 * (n % NF)
        if n >= NG:
            ks = n - NG
            if ks == 0:
                a.wait_vm("W1")
                a.e("s_barrier")
            sl = ks // 16
            off = (sl % 2) * 32768 + (ks % 8) * 4096 + ((ks % 16) // 8) * 512
            base = 6 + sl // 2
            a.ds(f"ds_read_b64_tr_b16 v[{f}:{f+1}], v{base} offset:{off}", ("F", n))
            a.ds(f"ds_read_b64_tr_b16 v[{f+2}:{f+3}], v{base} offset:{off+2048}", ("F", n))
            return
        j, ks, db = seq[n]
        if ks == 0 and db == 0:
            a.wait_vm(("W", j))
            a.e("s_barrier")
            if j == 1:
                a.e("s_cmp_lg_u32 s24, 0")
                a.e("s_cbranch_scc1 Ll1_nf")
                a.e("s_lshr_b32 s31, s2, 4")
                a.e("s_lshl_b32 s31, s31, 2")
                a.e("v_mov_b32 v106, 1")
                a.e("v_mov_b32 v107, 0")
                a.e("s_mov_b64 exec, 1")
                a.e("buffer_atomic_add v106, v107, s[36:39], s31 offen sc1")
                a.e("s_mov_b64 exec, -1")
                a.label("Ll1_nf")
        sl = wslot[j]
        base = [3, 3, 4, 4, 5][sl]
        off = (sl % 2) * 32768 + (ks % 8) * 4096 + db * 256 + (ks // 8) * 512
        a.ds(f"ds_read_b64_tr_b16 v[{f}:{f+1}], v{base} offset:{off}", ("F", n))
        a.ds(f"ds_read_b64_tr_b16 v[{f+2}:{f+3}], v{base} offset:{off+1024}", ("F", n))
    ev = {}
    def at(n, fn, e=None): (ev if e is None else e).setdefault(n, []).append(fn)
    def sched_rdA(n0, cs, slots):
        n = n0
        for c, sl in zip(cs, slots):
            at(n, (lambda c=c: a.wait_vm(("A", c))))
            for k4 in range(4):
                at(n + k4 // 2, (lambda c=c, sl=sl, k4=k4: rdA(c, sl, k4)))
            n += 2
    def sched_dma(n0, fn, idx, slot, dep=None):
        for i in range(4):
            if dep is not None and i == 0: at(n0, (lambda dep=dep: a.wait_lg(dep)))
            at(n0 + i, (lambda i=i: fn(idx, slot, i)))
    at(0, lambda: tA(4, 6)); at(0, lambda: tW(2, 3))
    at(16, lambda: tA(6, 8)); at(16, lambda: tW(3, 4))
    at(42, lambda: tW(4, 8))
    def tq():
        a.e("s_mov_b64 s[20:21], s[96:97]")
        a.e(f"s_mov_b32 s22, {SZ['wq']}")
        a.e("s_lshl_b32 s31, s2, 3")
        a.e("s_add_u32 s31, s31, s24")
        a.e("s_mul_i32 s33, s31, 2560")
        a.e("v_lshlrev_b32 v108, 3, v0")
        if "q" not in FL: return
        tch(0, 20, 108, 20, "s33")
        a.e("s_lshl_b32 s33, s31, 9")
        a.e("s_mov_b64 s[20:21], s[98:99]")
        a.e(f"s_mov_b32 s22, {SZ['w2']}")
        tch(0, 4, 108, 20, "s33")
    at(TQN, tq)
    sched_dma(0, dmaA, 2, 1)
    sched_dma(4, dmaW, 1, 3, [("RA", 0)])
    sched_dma(8, dmaA, 3, 4)
    sched_dma(12, dmaA, 4, 0, [("RA", 1)])
    sched_rdA(22, [2], [1])
    sched_rdA(28, [3], [4])
    sched_dma(26, dmaA, 5, 1, [("RA", 2)])
    sched_dma(32, dmaW, 2, 4, [("RA", 3)])
    sched_dma(36, dmaA, 6, 2)
    sched_rdA(40, [4], [0])
    sched_dma(44, dmaW, 3, 0, [("RA", 4)])
    sched_rdA(52, [5], [1])
    sched_dma(56, dmaA, 7, 1, [("RA", 5)])
    sched_rdA(62, [6], [2])
    sched_dma(66, dmaW, 5, 2, [("RA", 6)])
    sched_dma(70, dmaW, 6, 3)
    sched_rdA(84, [7], [1])
    sched_dma(88, dmaW, 4, 1, [("RA", 7)])
    sched_dma(100, dmaW, 7, 4)
    def tp():
        a.e("s_lshr_b32 s31, s2, 3")
        a.e("s_lshl_b32 s31, s31, 3")
        a.e("s_add_u32 s31, s31, s24")
        a.e("s_mul_i32 s33, s31, 3200")
        tch(0, 25, 108, 40, "s33")
    def tp2():
        a.e("s_and_b32 s59, s31, 127")
        a.e("s_mul_i32 s61, s59, 205")
        a.e("s_lshr_b32 s61, s61, 11")
        a.e("s_mul_i32 s33, s61, 10")
        a.e("s_sub_u32 s59, s59, s33")
        a.e("s_and_b32 s62, s2, 7")
        a.e("s_and_b32 s33, s61, 7")
        a.e("s_lshl_b32 s33, s33, 3")
        a.e("s_add_u32 s63, s33, s62")
        a.e("s_mul_i32 s63, s63, 81920")
        a.e("s_lshl_b32 s32, s59, 13")
        a.e("s_add_u32 s63, s63, s32")
        a.e("s_add_u32 s62, s62, 6")
        a.e("s_and_b32 s62, s62, 7")
        a.e("s_add_u32 s62, s62, s33")
        a.e("s_lshl_b32 s62, s62, 6")
        a.e(f"s_mul_i32 s32, s59, {64*3456}")
        a.e("s_add_u32 s62, s62, s32")
        a.e("s_cmp_ge_u32 s61, 8")
        a.e("s_cselect_b64 s[20:21], s[48:49], s[44:45]")
        a.e("s_cselect_b32 s22, s50, s46")
        a.e("s_cmp_ge_u32 s31, 128")
        a.e("s_cselect_b64 s[20:21], s[52:53], s[20:21]")
        a.e("s_cselect_b32 s22, s54, s22")
        a.e("s_cselect_b32 s63, s62, s63")
        a.e("s_cselect_b32 s62, 216, 8")
        a.e("s_cselect_b32 s33, 7, 12")
        a.e("v_mul_u32_u24 v109, s62, v0")
        a.e("s_cmp_lt_u32 s61, s33")
        a.e("s_cselect_b64 exec, -1, 0")
        a.vmem("buffer_load_dword v110, v109, s[20:23], s63 offen", "T")
        a.e("s_mov_b64 exec, -1")
    if "2" in FL: at(TPN + 2, tp2)
    if "1" in FL: at(TPN, tp)
    def pack(n0, acc, ndb, store):
        n = n0
        for db in range(ndb):
            for i in range(8):
                r = acc + 16 * db
                at(n + i // 2, (lambda r=r, i=i: a.e(f"v_cvt_pk_bf16_f32 v{r+i}, v{r+2*i}, v{r+2*i+1}")))
            at(n + 4, (lambda db=db: store(db, 0)))
            at(n + 5, (lambda db=db: store(db, 1)))
            n += 6
    def stK(db, rh):
        r = KACC + 16 * db + 4 * rh
        ds_ = 2 * db + rh
        if ds_ == 4: a.e("s_add_u32 s34, s34, 4096")
        a.vmem(f"buffer_store_dwordx4 v[{r}:{r+3}], v0, s[8:11], s34 offen offset:{(ds_%4)*1024}{SK}", "ST")
    def stV(acc):
        def f(db, rh):
            r = acc + 16 * db + 4 * rh
            a.vmem(f"buffer_store_dwordx4 v[{r}:{r+3}], v0, s[8:11], s35 offen offset:{rh*1024}{SK}", "ST")
            if rh == 1: a.e("s_add_u32 s35, s35, 4096")
        return f
    pack(131, KACC, 4, stK)
    pack(195, V1, 2, stV(V1))
    pack(258, V2, 2, stV(V2))
    def xreg(s):
        if s < 4: return f"v[{80+4*s}:{83+4*s}]"
        if s < 20: return f"a[{4*(s-4)}:{4*(s-4)+3}]"
        if s < 28: return f"v[{96+4*(s-20)}:{99+4*(s-20)}]"
        return f"a[{64+4*(s-28)}:{67+4*(s-28)}]"
    def run(n0, n1, nmf, ex):
        for n in range(n0, n1):
            for fn in ev.get(n, []): fn()
            for fn in ex.get(n, []): fn()
            if n >= nmf: continue
            if n % 32 == 0 and n <= 256: stamp(a, 1 + n // 32)
            if n + D < nmf: rd(n + D)
            a.wait_lg(("F", n))
            f = FR + 4 * (n % NF)
            if n >= NG:
                s = n - NG
                a.wait_vm(("X", s))
                a.e(f"v_mfma_f32_32x32x16_bf16 v[64:79], v[{f}:{f+3}], {xreg(s)}, {'0' if s==0 else 'v[64:79]'}")
                continue
            j, ks, db = seq[n]
            if j < 4:
                s = j * 8 + ks
                if ks == 0 and db == 0: a.wait_lg([("RA", 2 * j), ("RA", 2 * j + 1)])
                d = f"v[{KACC+16*db}:{KACC+16*db+15}]"
                c = "0" if s == 0 else d
                a.e(f"v_mfma_f32_32x32x16_bf16 {d}, v[{f}:{f+3}], a[{4*s}:{4*s+3}], {c}")
            else:
                ch, kk = (j - 4) >> 1, (j - 4) & 1
                s = kk * 16 + ks
                acc = V1 if ch == 0 else V2
                d = f"v[{acc+16*db}:{acc+16*db+15}]"
                c = "0" if s == 0 else d
                a.e(f"v_mfma_f32_32x32x16_bf16 {d}, a[{4*s}:{4*s+3}], v[{f}:{f+3}], {c}")
    def spread(ex, n0, ops, per=2):
        for k, o in enumerate(ops):
            at(n0 + k // per, (lambda o=o: a.e(o)), ex)
    for n in range(D): rd(n)
    NB = 116
    run(0, NB, NG, {})
    a.e("s_cmp_ge_u32 s2, 160")
    a.e("s_cbranch_scc1 Ll1_pk")
    save = (list(a.vm), list(a.lg), list(a.hist))
    ex = {}
    spread(ex, NB, [
        "s_and_b32 s25, s2, 7", "s_lshr_b32 s26, s2, 3", "s_lshl_b32 s25, s25, 1",
        "s_sub_u32 s27, s26, 10", "s_add_u32 s28, s25, 1", "s_cmp_ge_u32 s26, 10\ns_cselect_b32 s25, s28, s25\ns_cselect_b32 s26, s27, s26",
        "s_lshl_b32 s59, s25, 2",
        "v_mov_b32 v6, 0",
        "v_bfe_u32 v1, v0, 6, 2",
        "v_mul_u32_u24 v1, 1280, v1",
        "v_and_b32 v7, 0x30, v0",
        "v_add_u32 v1, v1, v7",
        "v_bfe_u32 v7, v0, 8, 1",
        "v_lshl_add_u32 v1, v7, 6, v1",
        "v_lshrrev_b32 v7, 9, v0",
        f"v_mul_u32_u24 v7, {128*1280}, v7",
        "v_add_u32 v1, v1, v7",
        f"s_mul_i32 s30, s24, {16*1280}", "s_lshl_b32 s27, s26, 7", "s_add_u32 s30, s30, s27",
        "s_and_b32 s27, s24, 3", "s_add_u32 s27, s27, s59",
        "s_mul_i32 s60, s27, 40960", f"s_add_u32 s60, s60, {WS_XN}",
        "s_lshl_b32 s61, s27, 5",
        "s_lshl_b32 s56, s27, 7", f"s_add_u32 s56, s56, {WS_XN2}",
        "s_lshr_b32 s28, s24, 2",
        "s_lshl_b32 s27, s26, 1", "s_add_u32 s27, s27, s28",
        "s_mov_b32 s31, 1",
        "s_cmp_ge_u32 s27, 5\ns_cselect_b32 s31, -1, s31",
        "s_cmp_ge_u32 s27, 10\ns_cselect_b32 s31, 2, s31",
        "s_cmp_ge_u32 s27, 15\ns_cselect_b32 s31, -2, s31",
        "s_add_u32 s61, s61, s31",
        "s_lshl_b32 s32, s27, 11", "s_add_u32 s57, s32, s60", f"s_add_u32 s32, s32, {WS_HS}",
        "s_lshl_b32 s28, s28, 8",
    ], 3)
    at(NB + 6, lambda: a.vmem("buffer_load_dword v7, v6, s[36:39], s59 offen sc1", "FL"), ex)
    def dmaW1(p, i):
        a.e(f"s_add_u32 m0, s29, {p*32768 + i*1024}")
        a.e(f"s_add_u32 s33, s30, {(p*256 + 4*i)*1280}")
        a.vmem(f"buffer_load_dwordx4 v1, s[40:43], s33 offen lds", "W1")
    for p in range(3):
        for i in range(4): at(133 + 32 * p + 2 * i, (lambda p=p, i=i: dmaW1(p, i)), ex)
    def poll():
        a.wait_vm("FL")
        spin_wait(a, "Ll1_w", 7, 6, 36, "s59", 16)
        a.e("v_lshlrev_b32 v6, 3, v0")
        tch(0, 16, 6, 8, "s57", 7)
    at(134, poll, ex)
    def ldX(s):
        a.e(f"s_add_u32 s33, s60, {(s//4)*4096}")
        a.vmem(f"buffer_load_dwordx4 {xreg(s)}, v0, s[8:11], s33 offen offset:{(s%4)*1024} sc1", ("X", s))
    for s in range(40):
        n = 160 + s if s < 4 else 194 + 2 * (s - 4) if s < 20 else 209 + 2 * (s - 20) if s < 28 else 226 + 2 * (s - 28)
        at(n, (lambda s=s: ldX(s)), ex)
    spread(ex, 174, [
        "v_lshrrev_b32 v7, 9, v0",
        "v_lshlrev_b32 v6, 10, v7",
        "v_and_b32 v2, 0xc0, v0",
        "v_add_u32 v6, v6, v2",
        "v_bfe_u32 v2, v0, 8, 1",
        "v_lshl_add_u32 v6, v2, 5, v6",
        "v_bfe_u32 v2, v0, 4, 2",
        "v_lshl_add_u32 v6, v2, 3, v6",
        "v_add_u32 v6, s28, v6",
        "v_bfe_u32 v2, v0, 4, 5",
        "v_add_u32 v2, s61, v2",
        "v_cmp_gt_u32 vcc, 0x800, v2",
        "v_and_b32 v64, 31, v2",
        "v_bfe_u32 v2, v2, 5, 6",
        "v_mul_u32_u24 v2, 0xa000, v2",
        "v_lshl_add_u32 v2, v64, 4, v2",
        "v_lshl_add_u32 v2, v7, 9, v2",
        "v_add_u32 v7, 0x10000, v6",
    ], 1)
    at(173, lambda: a.wait_vm("T"), ex)
    at(205, lambda: a.e("v_bfe_u32 v1, v0, 2, 7"), ex)
    at(207, lambda: a.vmem("buffer_load_dword v1, v1, s[8:11], s56 offen sc1", "R2"), ex)
    run(NB, NG + 40, NG + 40, ex)
    stamp(a, 12)
    a.wait_vm("R2")
    for i in range(16): a.e(f"v_mul_f32 v{64+i}, v1, v{64+i}")
    a.e(f"v_mov_b32 v32, {fx(GC2)}")
    for l in interleave([gelu_ops(64 + i, 33 + i, 32) for i in range(16)]): a.e(l)
    for i in range(8):
        a.e(f"v_cvt_pk_bf16_f32 v{64+i}, v{64+2*i}, v{65+2*i}")
    for i in range(8):
        a.e(f"v_cndmask_b32 v{64+i}, 0, v{64+i}, vcc")
    for rh in range(2):
        a.e(f"buffer_store_dwordx4 v[{64+4*rh}:{67+4*rh}], v2, s[8:11], s32 offen offset:{rh*1024}{SC}")
    stamp_store(a, 1, vb=96)
    a.e("s_endpgm")
    a.label("Ll1_pk")
    a.vm, a.lg, a.hist = list(save[0]), list(save[1]), list(save[2])
    ex = {}
    spread(ex, NB, [
        "s_sub_u32 s25, s2, 160",
        "s_sub_u32 s26, s25, 42",
        "s_cmp_ge_u32 s25, 42\ns_cselect_b32 s54, s54, 0\ns_cselect_b64 s[56:57], -1, 0\ns_cselect_b32 s26, s26, 0",
        "v_lshrrev_b32 v1, 6, v0",
        "v_mul_u32_u24 v1, 3456, v1",
        "v_and_b32 v7, 0x30, v0",
        "v_add_u32 v1, v1, v7",
        f"s_mul_i32 s30, s24, {80*3456}", "s_lshl_b32 s27, s26, 6", "s_add_u32 s30, s30, s27",
        "s_mul_i32 s59, s24, 5120",
        "s_sub_u32 s27, s25, 64",
        f"s_cmp_ge_u32 s25, 64\ns_cselect_b64 s[44:45], s[48:49], s[44:45]\ns_cselect_b32 s46, s50, s46\ns_cselect_b32 s27, s27, s25\ns_cselect_b32 s28, 54, 128\ns_cselect_b32 s61, {WS_W4P-WS_WOP}, 0",
        "s_mul_i32 s60, s27, 81920", "s_add_u32 s60, s60, s59",
        "s_mul_i32 s28, s28, s24", "s_lshl_b32 s27, s27, 1", "s_add_u32 s28, s28, s27", "s_mul_i32 s28, s28, 5120",
        "s_add_u32 s61, s61, s28", f"s_add_u32 s61, s61, {WS_WOP}",
        "s_mul_i32 s27, s26, 52", "s_lshr_b32 s27, s27, 8",
        "s_mul_i32 s28, s27, 195", "s_add_u32 s28, s28, s26",
        "s_mul_i32 s27, s24, 25", "s_add_u32 s28, s28, s27", "s_lshl_b32 s28, s28, 10", f"s_add_u32 s32, s28, {WS_W3P}",
        "v_lshrrev_b32 v7, 9, v0", "v_lshlrev_b32 v6, 8, v7", "v_and_b32 v2, 0xc0, v0", "v_add_u32 v6, v6, v2",
        "v_bfe_u32 v2, v0, 8, 1", "v_lshl_add_u32 v6, v2, 5, v6", "v_bfe_u32 v2, v0, 4, 2", "v_lshl_add_u32 v6, v2, 3, v6",
        "v_add_u32 v6, s59, v6",
        "v_lshlrev_b32 v7, 4, v7", "v_bfe_u32 v2, v0, 8, 1", "v_lshl_add_u32 v7, v2, 2, v7", "v_bfe_u32 v2, v0, 6, 2", "v_add_u32 v7, v7, v2",
        "v_mul_u32_u24 v7, 1280, v7", "v_bfe_u32 v2, v0, 4, 2", "v_lshl_add_u32 v7, v2, 3, v7",
        "s_mul_i32 s27, s24, 160", "s_add_u32 s27, s27, 40960", "v_add_u32 v7, s27, v7",
    ], 2)
    def dB(i):
        a.e(f"s_add_u32 m0, s59, {i*1024}")
        a.e(f"s_add_u32 s33, s30, {i*16*3456}")
        a.vmem(f"buffer_load_dwordx4 v1, s[52:55], s33 offen lds", "PB")
    def dA(u, i):
        a.e(f"s_add_u32 m0, s59, {40960*(u+1) + i*1024}")
        a.e(f"s_add_u32 s33, s60, {40960*u + i*1024}")
        a.vmem(f"buffer_load_dwordx4 v0, s[44:47], s33 offen{NP} lds", "PA")
    for i in range(5):
        at(165 + 2 * i, (lambda i=i: dB(i)), ex)
        at(197 + 2 * i + (i > 0) * 8, (lambda i=i: dA(0, i)), ex)
        at(229 + 2 * i, (lambda i=i: dA(1, i)), ex)
    at(216, lambda: a.wait_vm("PB"), ex)
    for i in range(5):
        at(216 + i, (lambda i=i: (a.ds(f"ds_read_b64_tr_b16 v[{64+4*i}:{65+4*i}], v6 offset:{i*1024}", "RB"),
                                  a.ds(f"ds_read_b64_tr_b16 v[{66+4*i}:{67+4*i}], v6 offset:{i*1024+512}", "RB"))), ex)
    at(226, lambda: a.wait_lg("RB"), ex)
    def stB(i):
        a.e("s_mov_b64 exec, s[56:57]")
        a.vmem(f"buffer_store_dwordx4 v[{64+4*i}:{67+4*i}], v0, s[8:11], s32 offen{SC}", "ST")
        a.e("s_mov_b64 exec, -1")
        a.e("s_add_u32 s32, s32, 5120")
    for i in range(5): at(226 + 2 * i, (lambda i=i: stB(i)), ex)
    spread(ex, 238, [f"v_dot2_f32_bf16 v84, v{64+i}, s58, {'0' if i==0 else 'v84'}" for i in range(20)] +
           ["v_lshrrev_b32 v86, 2, v0", "v_add_u32 v86, s59, v86"], 1)
    at(262, lambda: a.ds("ds_write_b32 v86, v84", "WB"), ex)
    run(NB, NG + 16, NG, ex)
    a.wait_vm("PA")
    a.wait_lg0()
    a.e("s_barrier")
    stamp(a, 12)
    a.e("s_cmp_ge_u32 s25, 91")
    a.e("s_cbranch_scc1 Ll1_pk2")
    for u in range(2):
        for i in range(5):
            r = 64 + 20 * u + 4 * i
            a.e(f"ds_read_b64_tr_b16 v[{r}:{r+1}], v7 offset:{40960*u + 32*i}")
            a.e(f"ds_read_b64_tr_b16 v[{r+2}:{r+3}], v7 offset:{40960*u + 32*i + 10240}")
        if u == 0: a.e("s_waitcnt lgkmcnt(4)")
    for k in range(10):
        r = 64 + 4 * k
        if k == 0: a.e("s_waitcnt lgkmcnt(10)")
        if k == 5: a.e("s_waitcnt lgkmcnt(0)")
        if k % 4 == 0 and k: a.e("s_add_u32 s61, s61, 4096")
        a.e(f"buffer_store_dwordx4 v[{r}:{r+3}], v0, s[8:11], s61 offen offset:{(k%4)*1024}{SC}")
    a.label("Ll1_pk2")
    a.hist = []
    a.e("s_cmp_lg_u32 s24, 7")
    a.e("s_cbranch_scc1 Ll1_pk3")
    a.e("s_cmp_lt_u32 s25, 42")
    a.e("s_cbranch_scc1 Ll1_pk3")
    a.e("v_lshrrev_b32 v6, 2, v0")
    for w in range(8): a.e(f"ds_read_b32 v{8+w}, v6 offset:{5120*w}")
    a.e("s_waitcnt lgkmcnt(0)")
    for w in range(1, 8): a.e(f"v_add_f32 v8, v8, v{8+w}")
    a.e("v_mov_b32 v9, v8")
    a.e("v_permlane32_swap_b32 v9, v8")
    a.e("v_add_f32 v8, v8, v9")
    a.e("s_lshl_b32 s27, s26, 7")
    a.e(f"s_add_u32 s27, s27, {WS_CS3}")
    a.e("s_mov_b32 exec_hi, 0")
    a.e(f"buffer_store_dword v8, v6, s[8:11], s27 offen{SC}")
    a.e("s_mov_b64 exec, -1")
    a.label("Ll1_pk3")
    stamp_store(a, 1, vb=108)
    a.label("Ll1_end")
    a.e("s_endpgm")
    print("l1 auto nops:", a.nnop)
    return Kern("l1_kernel", grid, 512, 163840, a.text(), 256, 128, 100)
```

```python
from common import *
from k_l1 import spin_wait

S_, Q_, NM, P_, O_, FR = 16, 80, 112, 128, 144, 208
NF = 8
VB, VL0, VL1, VMX, VQ, VNEG, VG, VT0, VT1 = 7, 8, 9, 10, 11, 12, 13, 14, 15
VG2 = 0
THR = 8.0
SC = " sc1"
qpos = [2, 0, 1, 3, 4]
XB = [O_, O_ + 32, NM, Q_, O_]
T5A, T5B = 1, 3
PRIO = int(os.environ.get("PRIO", "1"))

def mf(a, d, A, B, c):
    a.e(f"v_mfma_f32_32x32x16_bf16 v[{d}:{d+15}], v[{A}:{A+3}], v[{B}:{B+3}], {c}")
def rng16(d): return f"v[{d}:{d+15}]"

def rot(a, sW, sX, wbase, wstep, xbase, p, k="s31"):
    a.e(f"s_mul_i32 s{sW+p}, {k}, {wstep}")
    a.e(f"s_add_u32 s{sW+p}, s{sW+p}, {wbase}")
    a.e(f"s_lshl_b32 s{sX+p}, {k}, 13")
    a.e(f"s_add_u32 s{sX+p}, s{sX+p}, {xbase}")
    a.e(f"s_add_u32 {k}, {k}, 1")
    a.e(f"s_cmp_eq_u32 {k}, 5")
    a.e(f"s_cselect_b32 {k}, 0, {k}")

def ldx(a, st, i):
    r = XB[st] + 4 * i
    a.vmem(f"buffer_load_dwordx4 v[{r}:{r+3}], v{VG if i < 4 else VG2}, s[8:11], s{45+st} offen offset:{(i%4)*1024}", ("X", st, i // 4))
def ldw(a, st, g):
    a.e(f"s_add_u32 m0, s35, {qpos[st]*32768 + g*8192}")
    a.e(f"s_add_u32 s31, s{40+st}, {g*32*8192}")
    a.vmem(f"buffer_load_dwordx4 v3, s[4:7], s31 offen lds", ("W", st, g // 2))
def touchx(a, st):
    a.e("s_mov_b64 exec, 0xffff")
    a.vmem(f"buffer_load_dword v{VMX}, v9, s[8:11], s{45+st} offen", ("T", st))
    a.e("s_mov_b64 exec, -1")
def touch0(a):
    a.e("v_mul_u32_u24 v10, 52, v2")
    a.e("v_lshrrev_b32 v10, 8, v10")
    a.e(f"v_mul_u32_u24 v10, {163840-640}, v10")
    a.e("v_lshl_add_u32 v12, v2, 7, v10")
    a.e("v_and_b32 v11, 1, v2")
    a.e("v_lshlrev_b32 v11, 7, v11")
    a.e("v_bfe_u32 v10, v2, 1, 3")
    a.e("v_lshl_add_u32 v10, v10, 13, v11")
    a.e("v_cmp_le_u32 vcc, 32, v2")
    a.e("v_cndmask_b32 v12, v12, v10, vcc")
    a.e("v_bfe_u32 v10, v2, 1, 1")
    a.e("v_lshl_add_u32 v11, v10, 13, v11")
    a.e("v_bfe_u32 v10, v2, 2, 2")
    a.e("v_lshl_add_u32 v11, v10, 20, v11")
    a.e("v_cmp_le_u32 vcc, 48, v2")
    a.e("v_cndmask_b32 v12, v12, v11, vcc")
    a.e("s_lshl_b32 s31, s39, 3")
    a.e("s_add_u32 s31, s31, s24")
    a.e("s_mul_i32 s20, s31, 640")
    a.e("s_lshr_b32 s21, s31, 5")
    a.e("s_and_b32 s22, s2, 7")
    a.e("s_lshl_b32 s22, s22, 3")
    a.e("s_add_u32 s21, s21, s22")
    a.e("s_mul_i32 s21, s21, 40960")
    a.e("s_and_b32 s31, s31, 31")
    a.e("s_lshl_b32 s31, s31, 8")
    a.e("s_add_u32 s21, s21, s31")
    a.e(f"s_add_u32 s21, s21, {WS_HS}")
    a.e("s_lshl_b32 s22, s26, 3")
    a.e("s_add_u32 s22, s22, s24")
    a.e("s_lshl_b32 s22, s22, 14")
    a.e("s_lshl_b32 s31, s25, 8")
    a.e("s_add_u32 s22, s22, s31")
    a.e(f"s_add_u32 s22, s22, {1<<20}")
def msk(lo, hi): return ((1 << hi) - 1) ^ ((1 << lo) - 1)
def touch5(a, s0, s1):
    a.e(f"s_mov_b64 exec, {hex(msk(5*s0, 5*s1))}")
    a.vmem(f"buffer_load_dword v{VMX}, v12, s[12:15], s20 offen", "T0")
    a.e("s_mov_b32 exec_lo, 0")
    a.e(f"s_mov_b32 exec_hi, {hex(msk(2*s0, 2*s1))}")
    a.vmem(f"buffer_load_dword v{VMX}, v12, s[8:11], s21 offen", "T0")
    a.e("s_mov_b64 exec, -1")
def touchq(a, s0, s1):
    a.e("s_mov_b32 exec_lo, 0")
    a.e(f"s_mov_b32 exec_hi, {hex(msk(12+4*s0, 12+4*s1))}")
    a.vmem(f"buffer_load_dword v{VMX}, v12, s[4:7], s22 offen", "T0")
    a.e("s_mov_b64 exec, -1")
def qbatch(a):
    return ([lambda g=g: ldw(a, 0, g) for g in (0, 1)] + [lambda i=i: ldx(a, 0, i) for i in range(4)],
            [lambda g=g: ldw(a, 0, g) for g in (2, 3)] + [lambda i=i: ldx(a, 0, i) for i in range(4, 8)],
            [lambda: touchx(a, 1), lambda: touchx(a, 2)])

def l2_kernel(D=7):
    a = Asm()
    a.auto = True
    grid = 256
    stamp_init(a)
    load_srds(a, [(4, "wq"), (8, "ws"), (12, "w2"), (16, "dbg")])
    a.e("v_lshrrev_b32 v1, 6, v0")
    a.e("v_and_b32 v2, 63, v0")
    a.e("v_readfirstlane_b32 s24, v1")
    a.e(f"s_cmp_ge_u32 s2, {grid}")
    a.e("s_cbranch_scc1 Lat_end")
    a.e("s_and_b32 s25, s2, 7")
    a.e("s_lshl_b32 s25, s25, 2")
    a.e("s_bfe_u32 s39, s2, 0x20003")
    a.e("s_add_u32 s25, s25, s39")
    a.e("s_lshr_b32 s26, s2, 5")
    a.e("s_sub_u32 s31, 15, s26")
    a.e("s_sub_u32 s32, 7, s24")
    a.e("s_cmp_lt_u32 s24, 4")
    a.e("s_cselect_b32 s31, s31, s26")
    a.e("s_cselect_b32 s32, s24, s32")
    a.e("s_lshl_b32 s27, s31, 2")
    a.e("s_add_u32 s27, s27, s32")
    a.e("s_lshr_b32 s28, s27, 1")
    a.e("v_bfe_u32 v14, v2, 2, 2")
    a.e("v_and_b32 v15, 3, v2")
    a.e("v_lshrrev_b32 v1, 4, v2")
    a.e("v_lshlrev_b32 v4, 4, v15")
    a.e("v_lshl_add_u32 v4, v1, 6, v4")
    a.e("v_lshl_add_u32 v3, v14, 13, v4")
    a.e(f"v_lshlrev_b32 v{VG}, 4, v2")
    a.e(f"v_add_u32 v{VG2}, 0x1000, v{VG}")
    a.e("s_mul_i32 s33, s27, 40960")
    a.e(f"s_add_u32 s33, s33, {WS_XN}")
    a.e("s_lshl_b32 s34, s24, 15")
    a.e("s_lshl_b32 s31, s25, 8")
    a.e("s_add_u32 s34, s34, s31")
    a.e("s_lshl_b32 s35, s24, 10")
    a.e("s_mov_b32 s38, 0")
    a.e("s_lshl_b32 s31, s39, 11")
    a.e("v_lshlrev_b32 v9, 7, v2")
    a.e("v_add_u32 v9, s31, v9")
    rot(a, 40, 45, "s34", 1 << 20, "s33", 0, "s38")
    a.e("s_lshr_b32 s39, s2, 3")
    a.e("s_cmp_ge_u32 s39, 22")
    a.e("s_waitcnt lgkmcnt(0)")
    a.e("s_cbranch_scc1 Lat_s5")
    def misc():
        a.e("v_lshrrev_b32 v1, 5, v2")
        a.e("v_lshlrev_b32 v4, 10, v1")
        a.e("v_lshl_add_u32 v4, v14, 6, v4")
        a.e("v_bfe_u32 v14, v2, 4, 1")
        a.e("v_lshl_add_u32 v4, v14, 5, v4")
        a.e("v_lshl_add_u32 v4, v15, 3, v4")
        a.e("v_add_u32 v5, 0x10000, v4")
        a.e("v_add_u32 v6, 0x20000, v4")
        a.e(f"v_add_u32 v{VB}, 0x10000, v{VG}")
        a.e("s_and_b32 s31, s32, 1")
        a.e("s_lshl_b32 s31, s31, 5")
        a.e(f"v_and_b32 v{VQ}, 31, v2")
        a.e(f"v_add_u32 v{VQ}, s31, v{VQ}")
        a.e(f"v_lshlrev_b32 v15, 2, v1")
        a.e(f"v_sub_u32 v{VQ}, v{VQ}, v15")
        a.e("v_and_b32 v15, 15, v2")
        a.e("v_lshlrev_b32 v15, 4, v15")
        a.e("v_lshl_add_u32 v15, v14, 10, v15")
        a.e("v_lshl_add_u32 v1, v1, 8, v15")
        a.e("s_lshl_b32 s29, s25, 20")
        a.e("s_lshr_b32 s36, s27, 1")
        a.e("s_lshl_b32 s36, s36, 7")
        a.e("s_lshl_b32 s31, s25, 2")
        a.e("s_add_u32 s36, s36, s31")
        a.e("s_lshl_b32 s36, s36, 12")
        a.e("s_and_b32 s31, s27, 1")
        a.e("s_lshl_b32 s31, s31, 11")
        a.e("s_add_u32 s36, s36, s31")
        a.e(f"s_add_u32 s36, s36, {WS_CTX}")
        a.e("s_and_b32 s37, s24, 3")
        a.e("s_lshl_b32 s37, s37, 13")
        a.e("s_lshr_b32 s34, s37, 1")
    b1, b2, b3 = qbatch(a)
    for f in b1: f()
    for p in range(1, 3): rot(a, 40, 45, "s34", 1 << 20, "s33", p, "s38")
    a.e("s_barrier")
    for f in b2: f()
    canon = list(a.vm)
    touch0(a)
    touchq(a, 1, 2); touchx(a, 1); touch5(a, T5A, T5B)
    for p in range(3, 5): rot(a, 40, 45, "s34", 1 << 20, "s33", p, "s38")
    misc()
    assert len(a.vm) == len(canon) + 4
    canon0 = list(canon)
    canon = canon + ["Y"] * 4
    a.vm = list(canon)
    a.label("Lat_join")
    a.e("s_cmp_ge_u32 s24, 4")
    a.e("s_cbranch_scc1 Lat_B")
    a.hist = []
    body(a, True, D)
    a.label("Lat_B")
    a.vm, a.lg = list(canon), []
    a.hist = []
    body(a, False, D)
    a.label("Lat_s5")
    a.vm, a.lg, a.hist = [], [], []
    X5 = [S_ + 32, NM, Q_]
    a.e("s_sub_u32 s60, s39, 22")
    a.e("s_and_b32 s61, s2, 7")
    a.e("s_lshl_b32 s61, s61, 1")
    a.e("s_sub_u32 s31, s60, 5")
    a.e("s_add_u32 s62, s61, 1")
    a.e("s_cmp_ge_u32 s60, 5")
    a.e("s_cselect_b32 s60, s31, s60")
    a.e("s_cselect_b32 s61, s62, s61")
    a.e("s_lshl_b32 s62, s61, 2")
    a.e("s_and_b32 s31, s24, 3")
    a.e("s_add_u32 s62, s62, s31")
    a.e("s_mul_i32 s63, s62, 40960")
    a.e(f"s_add_u32 s30, s63, {WS_HS}")
    a.e(f"s_mul_i32 s29, s24, {4*1280}")
    a.e("s_lshl_b32 s31, s60, 8")
    a.e("s_add_u32 s29, s29, s31")
    a.e("v_mul_u32_u24 v8, 1280, v14")
    a.e("v_add_u32 v8, v8, v4")
    a.e("s_mov_b32 s36, 0")
    rot(a, 50, 55, "s29", 128 * 1280, "s30", 0, "s36")
    def ldx5(st, i):
        r = X5[st % 3] + 4 * i
        a.vmem(f"buffer_load_dwordx4 v[{r}:{r+3}], v{VG if i < 4 else VG2}, s[8:11], s{55+st} offen offset:{(i%4)*1024}", ("X5", st, i // 4))
    def ldw5(st, g):
        a.e(f"s_add_u32 m0, s35, {qpos[st]*32768 + g*8192}")
        a.e(f"s_add_u32 s31, s{50+st}, {g*32*1280}")
        a.vmem(f"buffer_load_dwordx4 v8, s[12:15], s31 offen lds", ("W5", st, g // 2))
    for g in (0, 1): ldw5(0, g)
    for i in range(4): ldx5(0, i)
    rot(a, 50, 55, "s29", 128 * 1280, "s30", 1, "s36")
    a.e("s_barrier")
    for g in (2, 3): ldw5(0, g)
    for i in range(4, 8): ldx5(0, i)
    touch0(a)
    touchq(a, 1, 2); touch5(a, T5A, T5B)
    a.e("s_barrier")
    for g in range(4): ldw5(1, g)
    for i in range(8): ldx5(1, i)
    for p in range(2, 5): rot(a, 50, 55, "s29", 128 * 1280, "s30", p, "s36")
    for p in range(1, 5): rot(a, 40, 45, "s34", 1 << 20, "s33", p, "s38")
    misc()
    a.e("s_lshr_b32 s31, s24, 2")
    a.e("s_lshl_b32 s30, s31, 9")
    for r in (4, 5, 6): a.e(f"v_add_u32 v{r}, s30, v{r}")
    a.e("s_lshl_b32 s60, s60, 1")
    a.e("s_add_u32 s60, s60, s31")
    a.e("s_lshl_b32 s31, s60, 12")
    a.e("s_add_u32 s63, s63, s31")
    a.e(f"s_add_u32 s33, s63, {WS_XN}")
    a.e(f"s_add_u32 s63, s63, {WS_X1}")
    a.e(f"s_mul_i32 s62, s62, {32*80}")
    a.e("s_lshl_b32 s60, s60, 3")
    a.e("s_add_u32 s62, s62, s60")
    a.e(f"s_add_u32 s62, s62, {WS_ST1}")
    seq = [(st, ks, db) for st in range(5) for ks in range(8) for db in range(2)]
    DQ = 6
    def rd5(n):
        st, ks, db = seq[n]
        if db == 0 and (ks == 0 or (st == 0 and ks == 4)):
            a.wait_vm(("W5", st, 1 if (st or ks) else 0))
            a.e("s_barrier")
        f = FR + 4 * (n % NF)
        p = qpos[st]
        base = [4, 4, 5, 5, 6][p]
        off = (p % 2) * 32768 + ks * 4096 + db * 256
        a.ds(f"ds_read_b64_tr_b16 v[{f}:{f+1}], v{base} offset:{off}", ("F", n))
        a.ds(f"ds_read_b64_tr_b16 v[{f+2}:{f+3}], v{base} offset:{off+2048}", ("F", n))
    ev = {}
    def at(n, fn): ev.setdefault(n, []).append(fn)
    for st in range(2, 5):
        for g in range(4): at(16 * (st - 2) + 1 + g, (lambda st=st, g=g: ldw5(st, g)))
        for i in range(8): at(16 * (st - 2) + 5 + i, (lambda st=st, i=i: ldx5(st, i)))
    for i in range(4):
        at(45 + i, (lambda i=i: a.vmem(f"buffer_load_dwordx4 v[{240+4*i}:{243+4*i}], v{VG}, s[8:11], s33 offen offset:{i*1024}", "RES")))
    b1, b2, b3 = qbatch(a)
    at(0, lambda: touch5(a, T5B, 5)); at(0, lambda: touchq(a, 2, 3))
    at(14, lambda: touchq(a, 3, 4)); at(30, lambda: touchq(a, 4, 5))
    at(31, lambda: touchx(a, 0))
    at(49, b3[0])
    for k, f in enumerate(b1 + b2): at(52 + 2 * k, f)
    for n in range(DQ): rd5(n)
    for n, (st, ks, db) in enumerate(seq):
        for fn in ev.get(n, []): fn()
        if n + DQ < len(seq): rd5(n + DQ)
        if db == 0 and ks % 4 == 0: a.wait_vm(("X5", st, ks // 4))
        if db == 0 and ks == 0 and st % 2 == 0: stamp(a, 10 + st // 2)
        a.wait_lg(("F", n))
        d = S_ + 16 * db
        mf(a, d, FR + 4 * (n % NF), X5[st % 3] + 4 * ks, "0" if (st == 0 and ks == 0) else rng16(d))
    for r in (4, 5, 6): a.e(f"v_subrev_u32 v{r}, s30, v{r}")
    a.e("v_mov_b32 v8, 0xffff0000")
    a.e(f"v_and_b32 v{VT0}, 31, v2")
    a.e(f"v_mul_u32_u24 v{VT0}, 80, v{VT0}")
    a.wait_vm("RES")
    T = FR
    for i in range(16):
        a.e(f"v_lshlrev_b32 v{T+2*i}, 16, v{240+i}")
        a.e(f"v_and_b32 v{T+2*i+1}, v8, v{240+i}")
    for i in range(32): a.e(f"v_add_f32 v{S_+i}, v{S_+i}, v{T+i}")
    for i in range(16): a.e(f"v_cvt_pk_bf16_f32 v{240+i}, v{S_+2*i}, v{S_+2*i+1}")
    for i in range(4):
        a.e(f"buffer_store_dwordx4 v[{240+4*i}:{243+4*i}], v{VG}, s[8:11], s63 offen offset:{i*1024}{SC}")
    U = S_ + 32
    for k in range(2):
        a.e(f"v_add_f32 v{U+2*k}, v{S_+2*k}, v{S_+2*k+1}")
        a.e(f"v_mul_f32 v{U+2*k+1}, v{S_+2*k}, v{S_+2*k}")
        a.e(f"v_fmac_f32 v{U+2*k+1}, v{S_+2*k+1}, v{S_+2*k+1}")
    for i in range(4, 32):
        k = i & 1
        a.e(f"v_add_f32 v{U+2*k}, v{U+2*k}, v{S_+i}")
        a.e(f"v_fmac_f32 v{U+2*k+1}, v{S_+i}, v{S_+i}")
    a.e(f"v_add_f32 v{U}, v{U}, v{U+2}")
    a.e(f"v_add_f32 v{U+1}, v{U+1}, v{U+3}")
    a.e(f"v_mov_b32 v{U+2}, v{U}")
    a.e(f"v_mov_b32 v{U+3}, v{U+1}")
    a.e(f"v_permlane32_swap_b32 v{U+2}, v{U}")
    a.e(f"v_permlane32_swap_b32 v{U+3}, v{U+1}")
    a.e(f"v_add_f32 v{U}, v{U}, v{U+2}")
    a.e(f"v_add_f32 v{U+1}, v{U+1}, v{U+3}")
    a.e("s_mov_b32 exec_hi, 0")
    a.e(f"buffer_store_dwordx2 v[{U}:{U+1}], v{VT0}, s[8:11], s62 offen{SC}")
    a.e("s_mov_b64 exec, -1")
    assert a.vm[-len(canon0):] == canon0, (a.vm, canon0)
    a.nop(2)
    a.e("s_branch Lat_join")
    a.label("Lat_end")
    a.e("s_endpgm")
    print("l2 auto nops:", a.nnop)
    return Kern("l2_kernel", grid, 512, 163840, a.text(), 256, 256, 100)

def body(a, isA, D):
    T = "A" if isA else "B"
    isB = not isA
    seq = [(st, ks, db) for st in range(5) for ks in range(8) for db in range(4)]
    DQ = 6
    def rdq(n):
        st, ks, db = seq[n]
        if db == 0 and (ks == 0 or (st == 0 and ks == 4)):
            a.wait_vm(("W", st, 1 if (st or ks) else 0))
            a.e("s_barrier")
            if st == 1 and isA:
                a.e("s_cmp_lt_u32 s39, 22")
                a.e("s_cbranch_scc1 Lat_nf")
                a.e("s_cmp_lg_u32 s24, 0")
                a.e("s_cbranch_scc1 Lat_nf")
                a.e("s_lshl_b32 s61, s61, 2")
                a.e("v_mov_b32 v8, 1")
                a.e(f"v_mov_b32 v{VT0}, 0")
                a.e("s_mov_b64 exec, 1")
                a.e(f"buffer_atomic_add v8, v{VT0}, s[16:19], s61 offen sc1")
                a.e("s_mov_b64 exec, -1")
                a.label("Lat_nf")
        f = FR + 4 * (n % NF)
        p = qpos[st]
        base = [4, 4, 5, 5, 6][p]
        off = (p % 2) * 32768 + ks * 4096 + db * 256
        a.ds(f"ds_read_b64_tr_b16 v[{f}:{f+1}], v{base} offset:{off}", ("F", n))
        a.ds(f"ds_read_b64_tr_b16 v[{f+2}:{f+3}], v{base} offset:{off+2048}", ("F", n))
    ev = {}
    def at(n, fn): ev.setdefault(n, []).append(fn)
    for st in range(1, 5):
        n0 = [0, 0, 28, 56, 84][st]
        for g in range(4): at(n0 + 1 + 2 * g, (lambda st=st, g=g: ldw(a, st, g)))
        for i in range(8): at(n0 + 9 + 2 * i, (lambda st=st, i=i: ldx(a, st, i)))
    at(0, lambda: touch5(a, T5B, 5)); at(0, lambda: touchq(a, 2, 3)); at(0, lambda: touchx(a, 2))
    at(25, lambda: touchq(a, 3, 4)); at(53, lambda: touchq(a, 4, 5))
    at(25, lambda: touchx(a, 3)); at(53, lambda: touchx(a, 4))
    def dma(tag, m0, goff, i, wsh):
        a.e(f"s_add_u32 m0, {wsh}, {m0 + (i//4)*4096}")
        if i % 4 == 0:
            a.e(f"s_add_u32 s23, s29, {goff + (i//4)*4096}")
            a.e(f"s_add_u32 s23, s23, {wsh}")
        a.vmem(f"buffer_load_dwordx4 v{VG}, s[8:11], s23 offen offset:{(i%4)*1024} lds", tag)
    if isB:
        for i in range(4): at(86 + 2 * i, (lambda i=i: dma(("KV", -1), 65536 + 16384, 0, i, "s34")))
        for i in range(8): at(108 + 2 * i, (lambda i=i: dma(("KV", 0), 0, 16384, i, "s37")))
        for i in range(8): at(125 + 2 * i, (lambda i=i: dma(("KV", 1), 32768, 16384 + 32768, i, "s37")))
    for i in range(16): at(100 + i, (lambda i=i: a.e(f"v_mov_b32 v{NM+i}, 0")))
    for i in range(32): at(66 + i, (lambda i=i: a.e(f"v_mov_b32 v{O_+32+i}, 0")))
    for n in range(DQ): rdq(n)
    for n, (st, ks, db) in enumerate(seq):
        for fn in ev.get(n, []): fn()
        if n + DQ < len(seq): rdq(n + DQ)
        if db == 0 and ks % 4 == 0: a.wait_vm(("X", st, ks // 4))
        if ks == 0 and db == 0: stamp(a, 1 + st)
        a.wait_lg(("F", n))
        f = FR + 4 * (n % NF)
        d = S_ + 16 * db
        mf(a, d, f, XB[st] + 4 * ks, "0" if (st == 0 and ks == 0) else rng16(d))
    stamp(a, 6)
    a.e("s_mov_b32 s38, 0x10000")
    if isB:
        a.e(f"s_add_u32 s29, s29, {16384 + 2*32768}")
        a.e(f"s_add_u32 s29, s29, s37")
        a.e("s_lshl_b32 s31, s26, 1")
        a.e("s_add_u32 s31, s31, s28")
        a.e("s_sub_u32 s52, 29, s31")
        a.wait_vm(("KV", -1))
    a.e("s_barrier")
    def rdK(n):
        f = FR + 4 * (n % NF)
        a.ds(f"ds_read_b128 v[{f}:{f+3}], v{VB} offset:{16384 + n*1024}", ("F", n % 32))
    def rdV(n):
        f = FR + 4 * (n % NF)
        ks, db = (n - 16) // 4, (n - 16) % 4
        a.ds(f"ds_read_b128 v[{f}:{f+3}], v{VB} offset:{(db*4+ks)*1024}", ("F", n % 32))
    def rdK2(n):
        f = FR + 4 * (n % NF)
        a.ds(f"ds_read_b128 v[{f}:{f+3}], v{VB} offset:{16384 + n*1024}", ("G", n))
    def slot_pre():
        if isB: a.e("s_add_u32 s30, s38, s37")
        a.e("s_add_u32 s38, s38, 0x8000")
        a.e("s_cmp_eq_u32 s38, 0x18000")
        a.e("s_cselect_b32 s38, 0, s38")
    def slot_post():
        a.e(f"v_add_u32 v{VB}, s38, v{VG}")
    def kvdma(i):
        if i % 4 == 0:
            a.e(f"s_add_u32 m0, s30, {(i//4)*4096}")
            if i: a.e(f"s_add_u32 s29, s29, 4096")
        a.vmem(f"buffer_load_dwordx4 v{VG}, s[8:11], s29 offen offset:{(i%4)*1024} lds", ("KV", "new"))
        if i == 7: a.e(f"s_add_u32 s29, s29, {32768-4096}")
    for n in range(D): rdK(n)
    if isB:
        a.e("s_and_b32 s61, s2, 7")
        a.e("s_lshl_b32 s61, s61, 1")
        a.e("s_sub_u32 s31, s39, 11")
        a.e("s_add_u32 s62, s61, 1")
        a.e("s_cmp_ge_u32 s39, 11")
        a.e("s_cselect_b32 s60, s31, s39")
        a.e("s_cselect_b32 s61, s62, s61")
        a.e("s_and_b32 s31, s24, 3")
        a.e("s_mul_i32 s53, s31, 5120")
        a.e(f"s_mul_i32 s54, s60, {200*1024}")
        a.e("s_add_u32 s54, s54, s53")
        a.e(f"s_add_u32 s54, s54, {WS_W3P}")
        a.e("s_add_u32 s53, s53, 0x18000")
        a.e("s_cmp_lt_u32 s39, 22")
        a.e("s_cselect_b64 exec, -1, 0")
    def w3dma(g, i, tag="W3"):
        a.e(f"s_add_u32 m0, s53, {(g%3)*20480 + (i//4)*4096}")
        a.e(f"s_add_u32 s31, s54, {g*20480 + (i//4)*4096}")
        a.vmem(f"buffer_load_dwordx4 v{VG}, s[8:11], s31 offen offset:{(i%4)*1024} lds", tag)
    if isB:
        for g in range(3):
            for i in range(5): w3dma(g, i)
        a.e("s_mov_b64 exec, -1")
    a.e(f"v_mov_b32 v{VT0}, {fx(LOG2E * 128 ** -0.5)}")
    for j in range(32):
        a.e(f"v_mul_f32 v{S_+2*j}, v{VT0}, v{S_+2*j}")
        a.e(f"v_mul_f32 v{S_+2*j+1}, v{VT0}, v{S_+2*j+1}")
        a.e(f"v_cvt_pk_bf16_f32 v{Q_+j}, v{S_+2*j}, v{S_+2*j+1}")
    a.e(f"v_mov_b32 v{VL0}, 0")
    a.e(f"v_mov_b32 v{VL1}, 0")
    a.e(f"v_mov_b32 v{VNEG}, {fx(-1e30)}")
    def maskinit(buf):
        for r in range(32):
            c = 32 * (r // 16) + 8 * ((r % 16) // 4) + (r % 4)
            sp = 44 + 2 * (r % 4)
            a.e(f"v_cmp_le_i32 s[{sp}:{sp+1}], {c}, v{VQ}")
            if r >= 3:
                q = r - 3; sq = 44 + 2 * (q % 4)
                a.e(f"v_cndmask_b32 v{buf+q}, v{VNEG}, v{NM}, s[{sq}:{sq+1}]")
        for q in range(29, 32):
            sq = 44 + 2 * (q % 4)
            a.e(f"v_cndmask_b32 v{buf+q}, v{VNEG}, v{NM}, s[{sq}:{sq+1}]")
    def qk0(masked):
        for n in range(16):
            if n + D < 16: rdK(n + D)
            if n + D == 16:
                slot_pre()
                if isB: a.wait_vm(("KV", 0))
                a.e("s_barrier")
                slot_post()
            if n + D >= 16: rdK2(n + D - 16)
            a.e(f"v_mov_b32 v{O_+2*n}, 0")
            a.e(f"v_mov_b32 v{O_+2*n+1}, 0")
            a.wait_lg(("F", n))
            kb, ds_ = n // 8, n % 8
            d = S_ + 16 * kb
            mf(a, d, FR + 4 * (n % NF), Q_ + 4 * ds_, rng16(d) if (ds_ or masked) else rng16(NM))
    st0 = (list(a.vm), list(a.lg))
    if isB:
        a.e("s_cmp_lg_u32 s28, 0")
        a.e(f"s_cbranch_scc1 Lat{T}_q0")
        maskinit(S_)
        qk0(True)
        a.e(f"s_branch Lat{T}_q1")
        a.label(f"Lat{T}_q0")
        a.vm, a.lg = list(st0[0]), list(st0[1])
    qk0(False)
    a.label(f"Lat{T}_q1")
    a.nop(12)
    def maxops(buf):
        ops = [f"v_max3_f32 v{VMX}, v{buf}, v{buf+1}, v{buf+2}"]
        for k in range(14):
            ops.append(f"v_max3_f32 v{VMX}, v{VMX}, v{buf+3+2*k}, v{buf+4+2*k}")
        ops.append(f"v_max_f32 v{VMX}, v{VMX}, v{buf+31}")
        return ops
    for o in maxops(S_): a.e(o)
    a.e(f"v_mov_b32 v{VT0}, v{VMX}")
    a.e(f"v_permlane32_swap_b32 v{VT0}, v{VMX}")
    a.e(f"v_max_f32 v{VMX}, v{VMX}, v{VT0}")
    for i in range(16): a.e(f"v_sub_f32 v{NM+i}, 0, v{VMX}")
    for i in range(32): a.e(f"v_sub_f32 v{S_+i}, v{S_+i}, v{VMX}")
    if isA and PRIO: a.e(f"s_setprio {PRIO}")
    def entry_state():
        a.lg = [("F", n) for n in range(D)]
        a.vm = [("KV", "next")] * 8 if isB else []
        a.hist = []
    resc = []
    def step(par, masked):
        cur, nxt = S_ + 32 * par, S_ + 32 * (1 - par)
        if masked: maskinit(nxt)
        slots = [[] for _ in range(32)]
        cost = [4 if s % 2 == 0 else 0 for s in range(32)]
        cost[24] += 12; cost[25] += 8; cost[28] += 4; cost[0] += 12
        eslot = {}
        e = 0
        for s in range(32):
            tgt = min(32, -(-32 * (s + 1) // 26))
            while e < tgt:
                slots[s].append(("E", e)); cost[s] += 8; eslot[e] = s; e += 1
        for j in range(16):
            s = eslot[2 * j + 1] + 1
            slots[s].append(("C", j)); cost[s] += 4
        mo = maxops(nxt)
        ms = list(range(10, 17)) + list(range(18, 27))
        for k, o in enumerate(mo):
            slots[ms[k]].append(("M", o)); cost[ms[k]] += 4
        if isB:
            for i in range(8): cost[1 + 2 * i] += 6
        e = 0
        rem = sum(cost) + 32 * 4
        for s in range(32):
            tgt = rem / (32 - s)
            while e < 32 and eslot[e] < s and (cost[s] + 4 <= tgt + 2 or s == 31):
                slots[s].append(("A", e)); cost[s] += 4; e += 1
            rem -= cost[s]
        assert e == 32
        for n in range(32):
            m = n + D
            if m == 31: slot_pre()
            if m < 16: rdK(m)
            elif m < 32: rdV(m)
            else:
                if m == 32:
                    if isB: a.wait_vm(("KV", "next"))
                    a.e("s_barrier")
                    slot_post()
                if not masked: rdK2(m - 32)
            if isB and n % 2 == 1 and n < 16: kvdma(n // 2)
            for k, x in slots[n]:
                if k == "E": a.e(f"v_exp_f32 v{cur+x}, v{cur+x}")
                elif k == "C": a.e(f"v_cvt_pk_bf16_f32 v{P_+x}, v{cur+2*x}, v{cur+2*x+1}")
                elif k == "M": a.e(x)
                else:
                    l = VL0 if x % 2 == 0 else VL1
                    a.e(f"v_add_f32 v{l}, v{l}, v{cur+x}")
            if n == 28: a.e(f"v_cmp_lt_f32 vcc, {fx(THR)}, v{VMX}")
            if n % 2 == 0: a.wait_lg([("F", n), ("F", n + 1)])
            f = FR + 4 * (n % NF)
            if n < 16:
                kb, ds_ = n // 8, n % 8
                d = nxt + 16 * kb
                mf(a, d, f, Q_ + 4 * ds_, rng16(d) if (ds_ or masked) else rng16(NM))
            else:
                ks, db = (n - 16) // 4, (n - 16) % 4
                d = O_ + 16 * db
                mf(a, d, f, P_ + 4 * ks, rng16(d))
        lab = a.newlabel(f"Lat{T}_rs")
        a.e(f"s_cbranch_vccnz {lab}")
        a.label(lab + "r")
        resc.append((lab, nxt))
    def final(par, barrier):
        cur = S_ + 32 * par
        a.lg = []; a.hist = []
        a.vm = [("KV", "next")] * 8 if isB else []
        for m in range(16, 16 + D): rdV(m)
        def grp(g):
            ops = []
            for e in range(8 * g, 8 * g + 8):
                ops.append(f"v_exp_f32 v{cur+e}, v{cur+e}")
            for j in range(4 * g, 4 * g + 4):
                ops.append(f"v_cvt_pk_bf16_f32 v{P_+j}, v{cur+2*j}, v{cur+2*j+1}")
            return ops
        def adds(g):
            return [f"v_add_f32 v{VL0 if e%2==0 else VL1}, v{VL0 if e%2==0 else VL1}, v{cur+e}" for e in range(8 * g, 8 * g + 8)]
        for o in grp(0): a.e(o)
        for n in range(16, 32):
            g = (n - 16) // 4
            if n + D < 32: rdV(n + D)
            if isB and n < 24: kvdma(n - 16)
            if n + D == 32 and barrier:
                if isB:
                    slot_pre()
                    a.wait_vm(("KV", "next"))
                a.e("s_barrier")
            a.wait_lg(("F", n))
            ks, db = (n - 16) // 4, (n - 16) % 4
            d = O_ + 16 * db
            mf(a, d, FR + 4 * (n % NF), P_ + 4 * ks, rng16(d))
            ops = (grp(g + 1) if g < 3 else []) + adds(g)
            k = (n - 16) % 4
            w = -(-len(ops) // 4)
            for o in ops[k * w:(k + 1) * w]: a.e(o)
        a.e(f"s_branch Lat{T}_epi")
    stamp(a, 7)
    if isB:
        a.e("s_cmp_eq_u32 s28, 0")
        a.e(f"s_cbranch_scc1 Lat{T}_f0")
    a.label(f"Lat{T}_loop")
    a.e("s_cmp_eq_u32 s28, 1")
    a.e(f"s_cbranch_scc1 Lat{T}_m0")
    entry_state()
    step(0, False)
    a.e("s_cmp_eq_u32 s28, 2")
    a.e(f"s_cbranch_scc1 Lat{T}_m1")
    entry_state()
    step(1, False)
    a.e("s_sub_u32 s28, s28, 2")
    a.e(f"s_branch Lat{T}_loop")
    a.label(f"Lat{T}_m0")
    stamp(a, 8)
    entry_state()
    step(0, True)
    final(1, isB)
    a.label(f"Lat{T}_m1")
    stamp(a, 8)
    entry_state()
    step(1, True)
    a.label(f"Lat{T}_f0")
    final(0, True)
    for lab, nxt in resc:
        a.label(lab)
        a.hist = []
        a.e(f"v_mov_b32 v{VT0}, v{VMX}")
        a.e(f"v_permlane32_swap_b32 v{VT0}, v{VMX}")
        a.e(f"v_max3_f32 v{VMX}, v{VMX}, v{VT0}, 0")
        a.e(f"v_sub_f32 v{VT0}, 0, v{VMX}")
        a.e(f"v_exp_f32 v{VT0}, v{VT0}")
        for i in range(16): a.e(f"v_sub_f32 v{NM+i}, v{NM+i}, v{VMX}")
        for i in range(32): a.e(f"v_sub_f32 v{nxt+i}, v{nxt+i}, v{VMX}")
        a.e(f"v_mul_f32 v{VL0}, v{VL0}, v{VT0}")
        a.e(f"v_mul_f32 v{VL1}, v{VL1}, v{VT0}")
        for i in range(64): a.e(f"v_mul_f32 v{O_+i}, v{O_+i}, v{VT0}")
        a.nop(2)
        a.e(f"s_branch {lab}r")
    a.label(f"Lat{T}_epi")
    a.hist = []; a.lg = []
    a.vm = [("KV", "next")] * 8 if isB else []
    stamp(a, 9)
    def kvblock():
        a.e("s_cmp_gt_i32 s52, 0")
        a.e("s_cselect_b64 exec, -1, 0")
        a.e("s_sub_u32 s52, s52, 1")
        for i in range(8): kvdma(i)
        a.e("s_mov_b64 exec, -1")
    def endper(extra=()):
        slot_pre()
        a.wait_vm([("KV", "next")] + list(extra))
        a.e("s_barrier")
        a.vm = [("KV", "next") if t == ("KV", "new") else t for t in a.vm]
    if isB:
        a.e("s_lshl_b32 s59, s61, 2")
        a.e("v_mov_b32 v6, 0")
        a.vmem("buffer_load_dword v5, v6, s[16:19], s59 offen sc1", "FL")
        kvblock()
    a.e(f"v_add_f32 v{VL0}, v{VL0}, v{VL1}")
    a.e(f"v_mov_b32 v{VT0}, v{VL0}")
    a.e(f"v_permlane32_swap_b32 v{VT0}, v{VL0}")
    a.e(f"v_add_f32 v{VL0}, v{VL0}, v{VT0}")
    a.e(f"v_rcp_f32 v{VL0}, v{VL0}")
    a.nop(4)
    for db in range(4):
        for j in range(8):
            r = O_ + 16 * db + 2 * j
            a.e(f"v_mul_f32 v{r}, v{r}, v{VL0}")
            a.e(f"v_mul_f32 v{r+1}, v{r+1}, v{VL0}")
            a.e(f"v_cvt_pk_bf16_f32 v{S_+8*db+j}, v{r}, v{r+1}")
        for rh in range(2):
            r = S_ + 8 * db + 4 * rh
            a.vmem(f"buffer_store_dwordx4 v[{r}:{r+3}], v1, s[8:11], s36 offen offset:{rh*512}", "ST")
        if db < 3: a.e("s_add_u32 s36, s36, 4096")
    if isA:
        stamp_store(a, 5)
        a.e("s_endpgm")
        return
    a.e("s_cmp_ge_u32 s39, 22")
    a.e("s_cbranch_scc1 LatB_ldt")
    ACC, XR, NX, CS = 16, 96, 16, 160
    a.e("s_lshl_b32 s62, s61, 2")
    a.e("s_and_b32 s31, s24, 3")
    a.e("s_add_u32 s62, s62, s31")
    a.e("s_mul_i32 s55, s62, 40960")
    a.e(f"s_add_u32 s55, s55, {WS_X1}")
    a.e(f"s_mul_i32 s56, s62, {32*80}")
    a.e(f"s_add_u32 s56, s56, {WS_ST1}")
    a.e("s_mul_i32 s57, s60, 640")
    a.e(f"s_add_u32 s57, s57, {WS_CS3}")
    a.e("s_lshr_b32 s58, s62, 1")
    a.e("s_mul_i32 s58, s58, 54")
    a.e("s_mul_i32 s31, s60, 5")
    a.e("s_add_u32 s58, s58, s31")
    a.e("s_lshl_b32 s58, s58, 12")
    a.e("s_and_b32 s31, s62, 1")
    a.e("s_lshl_b32 s31, s31, 11")
    a.e("s_add_u32 s58, s58, s31")
    a.e(f"s_add_u32 s58, s58, {WS_H3}")
    a.e("v_and_b32 v3, 31, v2")
    a.e("v_mul_u32_u24 v3, 80, v3")
    a.e("v_lshrrev_b32 v4, 5, v2")
    a.e("v_lshlrev_b32 v4, 4, v4")
    a.e(f"v_add_u32 v{VB}, 0x18000, v{VG}")
    a.wait_vm("FL")
    spin_wait(a, "LatB_w", 5, 6, 16, "s59", 5, cnt="s62")
    def ldx6(s):
        r = XR + 4 * (s % NX)
        if s % 8 == 0 and s: a.e("s_add_u32 s55, s55, 8192")
        a.vmem(f"buffer_load_dwordx4 v[{r}:{r+3}], v{VG if s % 8 < 4 else VG2}, s[8:11], s55 offen offset:{(s%4)*1024} sc1", ("X6", s))
    for s in range(4): ldx6(s)
    for i in range(5):
        a.vmem(f"buffer_load_dwordx4 v[{CS+4*i}:{CS+4*i+3}], v3, s[8:11], s56 offen offset:{i*16} sc1", "S6")
    for s in range(4, NX): ldx6(s)
    endper()
    a.e("s_bitcmp1_b32 s27, 1")
    a.e("s_cbranch_scc1 LatB_odd")
    sv2 = list(a.vm)
    kvblock()
    endper()
    a.label("LatB_odd")
    a.vm = [t for t in sv2 if t != ("KV", "next")]
    first = True
    stamp(a, 10)
    NM6, D6 = 200, 6
    def csreg(k): return (XR + 32 + 4 * k) if k < 8 else (CS + 4 * (k - 8))
    def ldcs(k):
        r = csreg(k)
        a.vmem(f"buffer_load_dwordx4 v[{r}:{r+3}], v4, s[8:11], s57 offen offset:{k*32}", ("CS", k // 4))
    def rd6(n):
        g, o = n // 20, n % 20
        f = FR + 4 * (n % NF)
        a.ds(f"ds_read_b128 v[{f}:{f+3}], v{VB} offset:{(g%3)*20480 + o*1024}", ("F", n))
    stat = []
    for i in range(1, 10):
        stat += [f"v_add_f32 v{CS}, v{CS}, v{CS+2*i}", f"v_add_f32 v{CS+1}, v{CS+1}, v{CS+2*i+1}"]
    stat += [f"v_mul_f32 v240, {fx(1/640)}, v{CS}", f"v_mul_f32 v241, {fx(1/640)}, v{CS+1}", "v_fma_f32 v241, -v240, v240, v241",
             "v_max_f32 v241, 0, v241", f"v_add_f32 v241, {fx(1e-5)}, v241", "v_rsq_f32 v244, v241", "v_nop",
             "v_mul_f32 v241, v241, v244", f"v_mul_f32 v242, {fx(GC1)}, v244", "v_mul_f32 v243, v244, v244",
             "v_mul_f32 v243, v243, v244", f"v_mul_f32 v243, {fx(GC2)}, v243"]
    kvblock()
    for n in range(D6): rd6(n)
    for n in range(NM6):
        ks, jb = n // 5, n % 5
        m = n + D6
        if m < NM6:
            if m % 20 == 0:
                g = m // 20
                if first:
                    a.vm = [("KV", "next") if k < len(a.vm) - 1 and a.vm[k + 1] == ("KV", "new") and t != ("KV", "new") else t for k, t in enumerate(a.vm)]
                    first = False
                endper([("W3", g)])
                kvblock()
            rd6(m)
        g, o = (m - 6) // 20, (m - 6) % 20
        if 1 <= g < 8 and o < 5: w3dma(g + 2, o, ("W3", g + 2))
        if n == 24: a.wait_vm("S6")
        if 24 <= n < 24 + 15:
            for o_ in stat[2 * (n - 24):2 * (n - 24) + 2]: a.e(o_)
        if 48 <= n < 60: ldcs(8 + n - 48)
        if jb == 0: a.wait_vm(("X6", ks))
        a.wait_lg(("F", n))
        d = ACC + 16 * jb
        mf(a, d, FR + 4 * (n % NF), XR + 4 * (ks % NX), "0" if ks == 0 else rng16(d))
        if jb == 4:
            if ks + NX < 40: ldx6(ks + NX)
            elif ks < 32: ldcs(ks - 24)
    stamp(a, 11)
    for q in range(10):
        jb, rh = [2, 3, 0, 1, 4][q // 2], q % 2
        endper()
        kvblock()
        if q == 8:
            a.e("s_cmp_eq_u32 s60, 10")
            a.e("s_cbranch_scc1 LatB_ldt8")
        a.wait_vm(("CS", jb))
        d = ACC + 16 * jb + 8 * rh
        c = csreg(4 * jb) + 8 * rh
        def g6(x, t, c_):
            return [f"v_fma_f32 v{x}, -v240, v{c_}, v{x}", f"v_mul_f32 v{t}, v{x}, v{x}", f"v_fma_f32 v{t}, v{t}, v243, v242",
                    f"v_mul_f32 v{t}, v{t}, v{x}", f"v_exp_f32 v{t}, v{t}", f"v_fma_f32 v{t}, v{t}, v241, v241",
                    f"v_rcp_f32 v{t}, v{t}", f"v_mul_f32 v{x}, v{x}, v{t}"]
        for l in interleave([g6(d + i, FR + i, c + i) for i in range(8)]): a.e(l)
        for i in range(4): a.e(f"v_cvt_pk_bf16_f32 v{d+i}, v{d+2*i}, v{d+2*i+1}")
        a.e(f"s_add_u32 s31, s58, {jb*4096}")
        a.vmem(f"buffer_store_dwordx4 v[{d}:{d+3}], v1, s[8:11], s31 offen offset:{rh*512}", "ST")
    a.label("LatB_ldt8")
    stamp(a, 12)
    a.e("s_waitcnt vmcnt(8)")
    a.label("LatB_ldt")
    a.hist = []
    slot_pre()
    a.e("s_waitcnt vmcnt(16)")
    a.e("s_barrier")
    a.label("LatB_ld")
    a.e("s_cmp_le_i32 s52, 0")
    a.e("s_cbranch_scc1 LatB_fin")
    a.e("s_sub_u32 s52, s52, 1")
    for i in range(8): kvdma(i)
    slot_pre()
    a.e("s_waitcnt vmcnt(8)")
    a.e("s_barrier")
    a.e("s_branch LatB_ld")
    a.label("LatB_fin")
    a.e("s_waitcnt vmcnt(0)")
    stamp_store(a, 5)
    a.e("s_endpgm")
```

```python
from common import *

def spin_wait(a, name, vreg, voff, srd, soff, target, barrier=False, cnt="s62"):
    a.e(f"v_readfirstlane_b32 s63, v{vreg}")
    a.e(f"s_cmp_ge_u32 s63, {target}")
    a.e(f"s_cbranch_scc1 {name}_ok")
    a.e(f"s_mov_b32 {cnt}, 8000")
    a.label(f"{name}_sp")
    if barrier: a.e("s_barrier")
    a.e("s_sleep 16")
    a.e(f"buffer_load_dword v{vreg}, v{voff}, s[{srd}:{srd+3}], {soff} offen sc1")
    a.e("s_waitcnt vmcnt(0)")
    a.e(f"v_readfirstlane_b32 s63, v{vreg}")
    a.e(f"s_cmp_ge_u32 s63, {target}")
    a.e(f"s_cbranch_scc1 {name}_ok")
    a.e(f"s_sub_u32 {cnt}, {cnt}, 1")
    a.e(f"s_cmp_lg_u32 {cnt}, 0")
    a.e(f"s_cbranch_scc1 {name}_sp")
    a.label(f"{name}_ok")

def l1_kernel():
    a = Asm()
    a.auto = True
    grid = 256
    SC = " sc1"
    FL = os.environ.get("FL", "q1")
    NW = " nt" if "w" in FL else ""
    NP = " nt" if "p" in FL else ""
    TQN = int(os.environ.get("TQN", 60)); TPN = int(os.environ.get("TPN", 76))
    SK = os.environ.get("SK", " sc1")
    stamp_init(a)
    load_srds(a, [(20, "x"), (4, "ckv"), (8, "ws"), (12, "wuk"), (16, "wuv"), (36, "dbg"), (40, "w1"), (44, "wo"), (48, "w4"), (52, "w3")])
    a.e(f"s_load_dwordx2 s[96:97], s[0:1], {KA['wq']}")
    a.e(f"s_load_dwordx2 s[98:99], s[0:1], {KA['w2']}")
    a.e("v_lshrrev_b32 v6, 6, v0")
    a.e("v_and_b32 v7, 63, v0")
    a.e("v_readfirstlane_b32 s24, v6")
    a.e(f"s_cmp_ge_u32 s2, {grid}")
    a.e("s_cbranch_scc1 Ll1_end")
    a.e("v_and_b32 v56, 7, v7")
    a.e("v_bfe_u32 v57, v7, 3, 2")
    a.e("v_lshrrev_b32 v58, 5, v7")
    a.e("v_mul_u32_u24 v59, 1280, v56")
    a.e("v_lshl_add_u32 v59, v57, 5, v59")
    a.e("v_lshl_add_u32 v59, v58, 4, v59")
    a.e("s_mul_i32 s27, s2, 10240")
    a.e("s_lshl_b32 s28, s24, 8")
    a.e("s_add_u32 s27, s27, s28")
    a.e("s_cmp_lt_u32 s24, 5")
    a.e("s_cselect_b64 s[56:57], -1, 0")
    a.e("s_and_b32 s25, s2, 7")
    a.e("s_lshl_b32 s25, s25, 2")
    a.e("s_bfe_u32 s28, s2, 0x20003")
    a.e("s_add_u32 s25, s25, s28")
    a.e("s_lshr_b32 s26, s2, 5")
    TMP = 96
    a.e(f"v_lshrrev_b32 v6, 3, v7")
    a.e(f"v_and_b32 v5, 7, v7")
    a.e(f"v_lshrrev_b32 v4, 1, v6")
    a.e(f"v_xor_b32 v5, v5, v4")
    a.e(f"v_lshlrev_b32 v6, 10, v6")
    a.e(f"v_lshl_add_u32 v{TMP}, v5, 4, v6")
    a.e(f"v_xor_b32 v{TMP+1}, 64, v{TMP}")
    a.e("v_lshrrev_b32 v108, 3, v7")
    a.e("v_lshlrev_b32 v108, 7, v108")
    a.e("v_lshl_add_u32 v108, v56, 10, v108")
    a.e("s_lshl_b32 s28, s28, 13")
    a.e("v_add_u32 v108, s28, v108")
    a.e("v_lshrrev_b32 v109, 2, v7")
    a.e("v_lshlrev_b32 v109, 20, v109")
    a.e("v_bfe_u32 v110, v7, 1, 1")
    a.e("v_lshl_add_u32 v109, v110, 13, v109")
    a.e("v_and_b32 v110, 1, v7")
    a.e("v_lshl_add_u32 v109, v110, 7, v109")
    a.e("s_lshl_b32 s60, s26, 3")
    a.e("s_add_u32 s60, s60, s24")
    a.e("s_lshl_b32 s60, s60, 14")
    a.e("s_lshl_b32 s28, s25, 8")
    a.e("s_add_u32 s60, s60, s28")
    a.e("s_lshl_b32 s28, s26, 18")
    a.e("s_lshl_b32 s29, s24, 15")
    a.e("s_add_u32 s28, s28, s29")
    a.e("s_lshl_b32 s29, s24, 12")
    def tch(lo, hi, voff, srd, soff, dst=110):
        m = ((1 << hi) - 1) ^ ((1 << lo) - 1)
        a.e(f"s_mov_b32 exec_lo, {hex(m & 0xffffffff)}")
        a.e(f"s_mov_b32 exec_hi, {hex(m >> 32)}")
        a.vmem(f"buffer_load_dword v{dst}, v{voff}, s[{srd}:{srd+3}], {soff} offen{NW if srd in (12, 16) else ''}", "T")
        a.e("s_mov_b64 exec, -1")
    def tA(c0, c1): tch(8 * c0, 8 * c1, 108, 4, "s28")
    def tW(j0, j1): tch(4 * (j0 % 4), 4 * (j0 % 4 + j1 - j0), 109, 12 if j0 < 4 else 16, "s60")
    a.e("s_waitcnt lgkmcnt(0)")
    a.e("s_mov_b64 exec, s[56:57]")
    a.vmem(f"buffer_load_dwordx4 v[32:35], v59, s[20:23], s27 offen{NP}", "LX")
    a.vmem(f"buffer_load_dwordx4 v[36:39], v59, s[20:23], s27 offen offset:128{NP}", "LX")
    tA(0, 2); tW(0, 1)
    a.e("s_barrier")
    def dmaA(c, slot, i):
        a.e(f"s_add_u32 m0, s29, {slot*32768 + i*1024}")
        a.e(f"s_add_u32 s33, s28, {i*8192 + c*128}")
        a.vmem(f"buffer_load_dwordx4 v{TMP+(i&1)}, s[4:7], s33 offen lds", ("A", c))
    def dmaW(j, slot, i):
        a.e(f"s_add_u32 m0, s29, {slot*32768 + i*1024}")
        if j < 4:
            a.e(f"s_add_u32 s33, s30, {(j*128 + 4*i)*8192}")
            a.vmem(f"buffer_load_dwordx4 v1, s[12:15], s33 offen{NW} lds", ("W", j))
        else:
            ch, kk = (j - 4) >> 1, (j - 4) & 1
            a.e(f"s_add_u32 s33, s30, {(kk*256 + 4*i)*8192 + ch*128}")
            a.vmem(f"buffer_load_dwordx4 v2, s[16:19], s33 offen{NW} lds", ("W", j))
    for i in range(4): dmaA(0, 3, i)
    a.e("v_bfe_u32 v4, v7, 2, 2")
    a.e("v_and_b32 v5, 3, v7")
    a.e("v_lshlrev_b32 v6, 13, v4")
    a.e("v_lshl_add_u32 v6, v5, 4, v6")
    a.e("v_lshrrev_b32 v3, 4, v7")
    a.e("v_lshl_add_u32 v1, v3, 6, v6")
    a.e("v_bfe_u32 v3, v7, 4, 1")
    a.e("v_lshl_add_u32 v2, v3, 6, v6")
    a.e("v_lshrrev_b32 v6, 5, v7")
    a.e("v_lshl_add_u32 v2, v6, 20, v2")
    a.e("s_lshl_b32 s30, s24, 17")
    a.e("s_lshl_b32 s27, s25, 8")
    a.e("s_add_u32 s30, s30, s27")
    for i in range(4): dmaW(0, 2, i)
    a.e("s_barrier")
    for i in range(4): dmaA(1, 0, i)
    a.e("v_lshlrev_b32 v3, 5, v3")
    a.e("v_lshl_add_u32 v3, v6, 11, v3")
    a.e("v_lshl_add_u32 v3, v4, 6, v3")
    a.e("v_lshl_add_u32 v3, v5, 3, v3")
    AR = TMP + 2
    a.e(f"v_and_b32 v4, 31, v7")
    a.e(f"v_bfe_u32 v5, v7, 1, 3")
    a.e(f"v_xor_b32 v5, v5, v6")
    a.e(f"v_lshlrev_b32 v5, 4, v5")
    a.e(f"v_lshl_add_u32 v5, v4, 7, v5")
    a.e(f"v_add_u32 v5, s29, v5")
    for k4 in range(4):
        a.e(f"v_xor_b32 v{AR+k4}, {k4*32}, v5")
        a.e(f"v_add_u32 v{AR+4+k4}, 0x18000, v{AR+k4}")
    a.e("v_add_u32 v4, 0x10000, v3")
    a.e("v_add_u32 v5, 0x20000, v3")
    a.e("v_lshlrev_b32 v0, 4, v7")
    a.e("s_lshl_b32 s34, s25, 20")
    a.e("s_lshl_b32 s27, s26, 17")
    a.e("s_add_u32 s34, s34, s27")
    a.e("s_lshr_b32 s27, s24, 1")
    a.e("s_lshl_b32 s27, s27, 15")
    a.e("s_add_u32 s34, s34, s27")
    a.e("s_and_b32 s27, s24, 1")
    a.e("s_lshl_b32 s35, s27, 11")
    a.e("s_add_u32 s35, s35, s34")
    a.e("s_add_u32 s35, s35, 16384")
    a.e("s_lshl_b32 s27, s27, 13")
    a.e("s_add_u32 s34, s34, s27")
    a.e("v_lshrrev_b32 v60, 3, v7")
    a.e("v_lshlrev_b32 v60, 12, v60")
    a.e("v_lshl_add_u32 v60, v56, 6, v60")
    a.e("s_lshl_b32 s27, s24, 3")
    a.e("s_add_u32 s27, s27, 0x20000")
    a.e("v_add_u32 v60, s27, v60")
    a.e("s_add_u32 s27, s29, 0x20000")
    a.e("v_lshlrev_b32 v61, 6, v56")
    a.e("v_add_u32 v61, s27, v61")
    a.e("v_lshlrev_b32 v62, 10, v57")
    a.e("v_lshl_add_u32 v62, v58, 9, v62")
    a.e("v_lshl_add_u32 v62, v56, 4, v62")
    a.e("s_and_b32 s27, s2, 3")
    a.e("s_lshl_b32 s27, s27, 7")
    a.e("v_add_u32 v62, s27, v62")
    a.e("s_lshr_b32 s27, s2, 2")
    a.e("s_mul_i32 s27, s27, 40960")
    a.e("s_lshl_b32 s31, s24, 13")
    a.e("s_add_u32 s27, s27, s31")
    a.e("s_mov_b32 s58, 0x3f803f80")
    a.e("v_mov_b32 v63, 0xffff0000")
    a.wait_vm("LX")
    stamp(a, 10)
    tA(2, 4); tW(1, 2)
    a.e("s_mov_b64 exec, s[56:57]")
    def ln(rnd, dst, wsoff):
        S, Q, T = 64, 65, 66
        for i in range(8):
            a.e(f"v_dot2_f32_bf16 v{S}, v{32+i}, s58, {'0' if i==0 else 'v%d'%S}")
            a.e(f"v_dot2_f32_bf16 v{Q}, v{32+i}, v{32+i}, {'0' if i==0 else 'v%d'%Q}")
        for i in range(4):
            a.e(f"v_lshlrev_b32 v{40+2*i}, 16, v{32+i}")
            a.e(f"v_and_b32 v{41+2*i}, v63, v{32+i}")
        a.e(f"v_add_f32_dpp v{S}, v{S}, v{S} row_ror:8 row_mask:0xf bank_mask:0xf")
        a.e(f"v_add_f32_dpp v{Q}, v{Q}, v{Q} row_ror:8 row_mask:0xf bank_mask:0xf")
        for pl in ("16", "32"):
            a.e(f"v_mov_b32 v{T}, v{S}")
            a.e(f"v_mov_b32 v{T+1}, v{Q}")
            a.e(f"v_permlane{pl}_swap_b32 v{T}, v{S}")
            a.e(f"v_permlane{pl}_swap_b32 v{T+1}, v{Q}")
            a.e(f"v_add_f32 v{S}, v{S}, v{T}")
            a.e(f"v_add_f32 v{Q}, v{Q}, v{T+1}")
        a.e(f"ds_write_b64 v60, v[{S}:{Q}] offset:{rnd*512}")
        for i in range(4, 8):
            a.e(f"v_lshlrev_b32 v{40+2*i}, 16, v{32+i}")
            a.e(f"v_and_b32 v{41+2*i}, v63, v{32+i}")
        a.e("s_waitcnt lgkmcnt(0)")
        a.e("s_barrier")
        a.e(f"ds_read_b128 v[68:71], v61 offset:{rnd*512}")
        a.e(f"ds_read_b128 v[72:75], v61 offset:{rnd*512+16}")
        a.e(f"ds_read_b64 v[76:77], v61 offset:{rnd*512+32}")
        a.e("s_waitcnt lgkmcnt(0)")
        for k in range(2):
            a.e(f"v_add_f32 v{68+k}, v{68+k}, v{70+k}")
            a.e(f"v_add_f32 v{72+k}, v{72+k}, v{74+k}")
        for k in range(2):
            a.e(f"v_add_f32 v{68+k}, v{68+k}, v{72+k}")
            a.e(f"v_add_f32 v{68+k}, v{68+k}, v{76+k}")
        a.e(f"v_mul_f32 v68, {fx(1/640)}, v68")
        a.e(f"v_mul_f32 v69, {fx(1/640)}, v69")
        a.e("v_fma_f32 v69, -v68, v68, v69")
        a.e("v_max_f32 v69, 0, v69")
        a.e(f"v_add_f32 v70, {fx(1e-5)}, v69")
        a.e("v_rcp_f32 v71, v70")
        a.e("v_rsq_f32 v70, v70")
        a.e("v_lshlrev_b32 v72, 2, v56")
        a.e(f"v_fmaak_f32 v71, v71, v69, {fx(1e-5)}")
        a.e("v_mov_b32 v69, v70")
        a.e("v_rsq_f32 v71, v71")
        a.e("v_mul_f32 v68, v68, v69")
        for i in range(16): a.e(f"v_fma_f32 v{40+i}, v{40+i}, v69, -v68")
        for i in range(8):
            a.e(f"v_cvt_pk_bf16_f32 v{dst+i}, v{40+2*i}, v{41+2*i}")
        for h in range(2):
            a.e(f"v_permlane32_swap_b32 v{dst+4*h}, v{dst+4*h+2}")
            a.e(f"v_permlane32_swap_b32 v{dst+4*h+1}, v{dst+4*h+3}")
        for h in range(2):
            a.e(f"s_add_u32 s31, s27, {wsoff + 4096*h}")
            a.vmem(f"buffer_store_dwordx4 v[{dst+4*h}:{dst+4*h+3}], v62, s[8:11], s31 offen{SC}", "LS")
    ln(0, 80, WS_XN)
    a.e("s_cmp_eq_u32 s24, 0")
    a.e("s_cselect_b32 exec_lo, 0xff, 0")
    a.e("s_mov_b32 exec_hi, 0")
    a.e("s_lshl_b32 s31, s2, 5")
    a.e(f"s_add_u32 s31, s31, {WS_XN2}")
    a.vmem(f"buffer_store_dword v71, v72, s[8:11], s31 offen{SC}", "LS")
    a.e("s_mov_b64 exec, -1")
    stamp(a, 11)
    def rdA(c, slot, k4):
        s = 4 * c + k4
        if slot == 2:
            r, off = 111 + k4, 0
            a.e(f"v_add_u32 v{r}, 0x10000, v{AR+k4}")
        elif slot < 3: r, off = AR + k4, slot * 32768
        else: r, off = AR + 4 + k4, (slot - 3) * 32768
        a.ds(f"ds_read_b128 a[{4*s}:{4*s+3}], v{r} offset:{off}", ("RA", c))
    a.wait_vm(("A", 0))
    for k4 in range(4): rdA(0, 3, k4)
    a.wait_vm(("A", 1))
    for k4 in range(4): rdA(1, 0, k4)
    wslot = {0: 2, 1: 3, 2: 4, 3: 0, 4: 1, 5: 2, 6: 3, 7: 4}
    FR, NF, D = 8, 6, 5
    KACC, V1, V2 = 32, 96, 32
    seq = []
    for j in range(4):
        for ks in range(8):
            for db in range(4): seq.append((j, ks, db))
    for j in range(4, 8):
        for ks in range(16):
            for db in range(2): seq.append((j, ks, db))
    NG = len(seq)
    def rd(n):
        f = FR + 4 * (n % NF)
        if n >= NG:
            ks = n - NG
            if ks == 0:
                a.wait_vm("W1")
                a.e("s_barrier")
            sl = ks // 16
            off = (sl % 2) * 32768 + (ks % 8) * 4096 + ((ks % 16) // 8) * 512
            base = 6 + sl // 2
            a.ds(f"ds_read_b64_tr_b16 v[{f}:{f+1}], v{base} offset:{off}", ("F", n))
            a.ds(f"ds_read_b64_tr_b16 v[{f+2}:{f+3}], v{base} offset:{off+2048}", ("F", n))
            return
        j, ks, db = seq[n]
        if ks == 0 and db == 0:
            a.wait_vm(("W", j))
            a.e("s_barrier")
            if j == 1:
                a.e("s_cmp_lg_u32 s24, 0")
                a.e("s_cbranch_scc1 Ll1_nf")
                a.e("s_lshr_b32 s31, s2, 4")
                a.e("s_lshl_b32 s31, s31, 2")
                a.e("v_mov_b32 v106, 1")
                a.e("v_mov_b32 v107, 0")
                a.e("s_mov_b64 exec, 1")
                a.e("buffer_atomic_add v106, v107, s[36:39], s31 offen sc1")
                a.e("s_mov_b64 exec, -1")
                a.label("Ll1_nf")
        sl = wslot[j]
        base = [3, 3, 4, 4, 5][sl]
        off = (sl % 2) * 32768 + (ks % 8) * 4096 + db * 256 + (ks // 8) * 512
        a.ds(f"ds_read_b64_tr_b16 v[{f}:{f+1}], v{base} offset:{off}", ("F", n))
        a.ds(f"ds_read_b64_tr_b16 v[{f+2}:{f+3}], v{base} offset:{off+1024}", ("F", n))
    ev = {}
    def at(n, fn, e=None): (ev if e is None else e).setdefault(n, []).append(fn)
    def sched_rdA(n0, cs, slots):
        n = n0
        for c, sl in zip(cs, slots):
            at(n, (lambda c=c: a.wait_vm(("A", c))))
            for k4 in range(4):
                at(n + k4 // 2, (lambda c=c, sl=sl, k4=k4: rdA(c, sl, k4)))
            n += 2
    def sched_dma(n0, fn, idx, slot, dep=None):
        for i in range(4):
            if dep is not None and i == 0: at(n0, (lambda dep=dep: a.wait_lg(dep)))
            at(n0 + i, (lambda i=i: fn(idx, slot, i)))
    at(0, lambda: tA(4, 6)); at(0, lambda: tW(2, 3))
    at(16, lambda: tA(6, 8)); at(16, lambda: tW(3, 4))
    at(42, lambda: tW(4, 8))
    def tq():
        a.e("s_mov_b64 s[20:21], s[96:97]")
        a.e(f"s_mov_b32 s22, {SZ['wq']}")
        a.e("s_lshl_b32 s31, s2, 3")
        a.e("s_add_u32 s31, s31, s24")
        a.e("s_mul_i32 s33, s31, 2560")
        a.e("v_lshlrev_b32 v108, 3, v0")
        if "q" not in FL: return
        tch(0, 20, 108, 20, "s33")
        a.e("s_lshl_b32 s33, s31, 9")
        a.e("s_mov_b64 s[20:21], s[98:99]")
        a.e(f"s_mov_b32 s22, {SZ['w2']}")
        tch(0, 4, 108, 20, "s33")
    at(TQN, tq)
    sched_dma(0, dmaA, 2, 1)
    sched_dma(4, dmaW, 1, 3, [("RA", 0)])
    sched_dma(8, dmaA, 3, 4)
    sched_dma(12, dmaA, 4, 0, [("RA", 1)])
    sched_rdA(22, [2], [1])
    sched_rdA(28, [3], [4])
    sched_dma(26, dmaA, 5, 1, [("RA", 2)])
    sched_dma(32, dmaW, 2, 4, [("RA", 3)])
    sched_dma(36, dmaA, 6, 2)
    sched_rdA(40, [4], [0])
    sched_dma(44, dmaW, 3, 0, [("RA", 4)])
    sched_rdA(52, [5], [1])
    sched_dma(56, dmaA, 7, 1, [("RA", 5)])
    sched_rdA(62, [6], [2])
    sched_dma(66, dmaW, 5, 2, [("RA", 6)])
    sched_dma(70, dmaW, 6, 3)
    sched_rdA(84, [7], [1])
    sched_dma(88, dmaW, 4, 1, [("RA", 7)])
    sched_dma(100, dmaW, 7, 4)
    def tp():
        a.e("s_lshr_b32 s31, s2, 3")
        a.e("s_lshl_b32 s31, s31, 3")
        a.e("s_add_u32 s31, s31, s24")
        a.e("s_mul_i32 s33, s31, 3200")
        tch(0, 25, 108, 40, "s33")
    def tp2():
        a.e("s_and_b32 s59, s31, 127")
        a.e("s_mul_i32 s61, s59, 205")
        a.e("s_lshr_b32 s61, s61, 11")
        a.e("s_mul_i32 s33, s61, 10")
        a.e("s_sub_u32 s59, s59, s33")
        a.e("s_and_b32 s62, s2, 7")
        a.e("s_and_b32 s33, s61, 7")
        a.e("s_lshl_b32 s33, s33, 3")
        a.e("s_add_u32 s63, s33, s62")
        a.e("s_mul_i32 s63, s63, 81920")
        a.e("s_lshl_b32 s32, s59, 13")
        a.e("s_add_u32 s63, s63, s32")
        a.e("s_add_u32 s62, s62, 6")
        a.e("s_and_b32 s62, s62, 7")
        a.e("s_add_u32 s62, s62, s33")
        a.e("s_lshl_b32 s62, s62, 6")
        a.e(f"s_mul_i32 s32, s59, {64*3456}")
        a.e("s_add_u32 s62, s62, s32")
        a.e("s_cmp_ge_u32 s61, 8")
        a.e("s_cselect_b64 s[20:21], s[48:49], s[44:45]")
        a.e("s_cselect_b32 s22, s50, s46")
        a.e("s_cmp_ge_u32 s31, 128")
        a.e("s_cselect_b64 s[20:21], s[52:53], s[20:21]")
        a.e("s_cselect_b32 s22, s54, s22")
        a.e("s_cselect_b32 s63, s62, s63")
        a.e("s_cselect_b32 s62, 216, 8")
        a.e("s_cselect_b32 s33, 7, 12")
        a.e("v_mul_u32_u24 v109, s62, v0")
        a.e("s_cmp_lt_u32 s61, s33")
        a.e("s_cselect_b64 exec, -1, 0")
        a.vmem("buffer_load_dword v110, v109, s[20:23], s63 offen", "T")
        a.e("s_mov_b64 exec, -1")
    if "2" in FL: at(TPN + 2, tp2)
    if "1" in FL: at(TPN, tp)
    def pack(n0, acc, ndb, store):
        n = n0
        for db in range(ndb):
            for i in range(8):
                r = acc + 16 * db
                if ndb == 4:
                    at(n + i // 2, (lambda r=r, i=i: a.e(f"v_mul_f32 v{r+2*i}, s96, v{r+2*i}\nv_mul_f32 v{r+2*i+1}, s96, v{r+2*i+1}")))
                at(n + i // 2, (lambda r=r, i=i: a.e(f"v_cvt_pk_bf16_f32 v{r+i}, v{r+2*i}, v{r+2*i+1}")))
            at(n + 4, (lambda db=db: store(db, 0)))
            at(n + 5, (lambda db=db: store(db, 1)))
            n += 6
    def stK(db, rh):
        r = KACC + 16 * db + 4 * rh
        ds_ = 2 * db + rh
        if ds_ == 4: a.e("s_add_u32 s34, s34, 4096")
        a.vmem(f"buffer_store_dwordx4 v[{r}:{r+3}], v0, s[8:11], s34 offen offset:{(ds_%4)*1024}{SK}", "ST")
    def stV(acc):
        def f(db, rh):
            r = acc + 16 * db + 4 * rh
            a.vmem(f"buffer_store_dwordx4 v[{r}:{r+3}], v0, s[8:11], s35 offen offset:{rh*1024}{SK}", "ST")
            if rh == 1: a.e("s_add_u32 s35, s35, 4096")
        return f
    at(112, lambda: a.e(f"s_mov_b32 s96, {fx(LOG2E * 128 ** -0.5)}"))
    pack(131, KACC, 4, stK)
    pack(195, V1, 2, stV(V1))
    pack(258, V2, 2, stV(V2))
    def xreg(s):
        if s < 4: return f"v[{80+4*s}:{83+4*s}]"
        if s < 20: return f"a[{4*(s-4)}:{4*(s-4)+3}]"
        if s < 28: return f"v[{96+4*(s-20)}:{99+4*(s-20)}]"
        return f"a[{64+4*(s-28)}:{67+4*(s-28)}]"
    def run(n0, n1, nmf, ex):
        for n in range(n0, n1):
            for fn in ev.get(n, []): fn()
            for fn in ex.get(n, []): fn()
            if n >= nmf: continue
            if n % 32 == 0 and n <= 256: stamp(a, 1 + n // 32)
            if n + D < nmf: rd(n + D)
            a.wait_lg(("F", n))
            f = FR + 4 * (n % NF)
            if n >= NG:
                s = n - NG
                a.wait_vm(("X", s))
                a.e(f"v_mfma_f32_32x32x16_bf16 v[64:79], v[{f}:{f+3}], {xreg(s)}, {'0' if s==0 else 'v[64:79]'}")
                continue
            j, ks, db = seq[n]
            if j < 4:
                s = j * 8 + ks
                if ks == 0 and db == 0: a.wait_lg([("RA", 2 * j), ("RA", 2 * j + 1)])
                d = f"v[{KACC+16*db}:{KACC+16*db+15}]"
                c = "0" if s == 0 else d
                a.e(f"v_mfma_f32_32x32x16_bf16 {d}, v[{f}:{f+3}], a[{4*s}:{4*s+3}], {c}")
            else:
                ch, kk = (j - 4) >> 1, (j - 4) & 1
                s = kk * 16 + ks
                acc = V1 if ch == 0 else V2
                d = f"v[{acc+16*db}:{acc+16*db+15}]"
                c = "0" if s == 0 else d
                a.e(f"v_mfma_f32_32x32x16_bf16 {d}, a[{4*s}:{4*s+3}], v[{f}:{f+3}], {c}")
    def spread(ex, n0, ops, per=2):
        for k, o in enumerate(ops):
            at(n0 + k // per, (lambda o=o: a.e(o)), ex)
    for n in range(D): rd(n)
    NB = 116
    run(0, NB, NG, {})
    a.e("s_cmp_ge_u32 s2, 160")
    a.e("s_cbranch_scc1 Ll1_pk")
    save = (list(a.vm), list(a.lg), list(a.hist))
    ex = {}
    spread(ex, NB, [
        "s_and_b32 s25, s2, 7", "s_lshr_b32 s26, s2, 3", "s_lshl_b32 s25, s25, 1",
        "s_sub_u32 s27, s26, 10", "s_add_u32 s28, s25, 1", "s_cmp_ge_u32 s26, 10\ns_cselect_b32 s25, s28, s25\ns_cselect_b32 s26, s27, s26",
        "s_lshl_b32 s59, s25, 2",
        "v_mov_b32 v6, 0",
        "v_bfe_u32 v1, v0, 6, 2",
        "v_mul_u32_u24 v1, 1280, v1",
        "v_and_b32 v7, 0x30, v0",
        "v_add_u32 v1, v1, v7",
        "v_bfe_u32 v7, v0, 8, 1",
        "v_lshl_add_u32 v1, v7, 6, v1",
        "v_lshrrev_b32 v7, 9, v0",
        f"v_mul_u32_u24 v7, {128*1280}, v7",
        "v_add_u32 v1, v1, v7",
        f"s_mul_i32 s30, s24, {16*1280}", "s_lshl_b32 s27, s26, 7", "s_add_u32 s30, s30, s27",
        "s_and_b32 s27, s24, 3", "s_add_u32 s27, s27, s59",
        "s_mul_i32 s60, s27, 40960", f"s_add_u32 s60, s60, {WS_XN}",
        "s_lshl_b32 s61, s27, 5",
        "s_lshl_b32 s56, s27, 7", f"s_add_u32 s56, s56, {WS_XN2}",
        "s_lshr_b32 s28, s24, 2",
        "s_lshl_b32 s27, s26, 1", "s_add_u32 s27, s27, s28",
        "s_mov_b32 s31, 1",
        "s_cmp_ge_u32 s27, 5\ns_cselect_b32 s31, -1, s31",
        "s_cmp_ge_u32 s27, 10\ns_cselect_b32 s31, 2, s31",
        "s_cmp_ge_u32 s27, 15\ns_cselect_b32 s31, -2, s31",
        "s_add_u32 s61, s61, s31",
        "s_lshl_b32 s32, s27, 11", "s_add_u32 s57, s32, s60", f"s_add_u32 s32, s32, {WS_HS}",
        "s_lshl_b32 s28, s28, 8",
    ], 3)
    at(NB + 6, lambda: a.vmem("buffer_load_dword v7, v6, s[36:39], s59 offen sc1", "FL"), ex)
    def dmaW1(p, i):
        a.e(f"s_add_u32 m0, s29, {p*32768 + i*1024}")
        a.e(f"s_add_u32 s33, s30, {(p*256 + 4*i)*1280}")
        a.vmem(f"buffer_load_dwordx4 v1, s[40:43], s33 offen lds", "W1")
    for p in range(3):
        for i in range(4): at(133 + 32 * p + 2 * i, (lambda p=p, i=i: dmaW1(p, i)), ex)
    def poll():
        a.wait_vm("FL")
        spin_wait(a, "Ll1_w", 7, 6, 36, "s59", 16)
        a.e("v_lshlrev_b32 v6, 3, v0")
        tch(0, 16, 6, 8, "s57", 7)
    at(134, poll, ex)
    def ldX(s):
        a.e(f"s_add_u32 s33, s60, {(s//4)*4096}")
        a.vmem(f"buffer_load_dwordx4 {xreg(s)}, v0, s[8:11], s33 offen offset:{(s%4)*1024} sc1", ("X", s))
    for s in range(40):
        n = 160 + s if s < 4 else 194 + 2 * (s - 4) if s < 20 else 209 + 2 * (s - 20) if s < 28 else 226 + 2 * (s - 28)
        at(n, (lambda s=s: ldX(s)), ex)
    spread(ex, 174, [
        "v_lshrrev_b32 v7, 9, v0",
        "v_lshlrev_b32 v6, 10, v7",
        "v_and_b32 v2, 0xc0, v0",
        "v_add_u32 v6, v6, v2",
        "v_bfe_u32 v2, v0, 8, 1",
        "v_lshl_add_u32 v6, v2, 5, v6",
        "v_bfe_u32 v2, v0, 4, 2",
        "v_lshl_add_u32 v6, v2, 3, v6",
        "v_add_u32 v6, s28, v6",
        "v_bfe_u32 v2, v0, 4, 5",
        "v_add_u32 v2, s61, v2",
        "v_cmp_gt_u32 vcc, 0x800, v2",
        "v_and_b32 v64, 31, v2",
        "v_bfe_u32 v2, v2, 5, 6",
        "v_mul_u32_u24 v2, 0xa000, v2",
        "v_lshl_add_u32 v2, v64, 4, v2",
        "v_lshl_add_u32 v2, v7, 9, v2",
        "v_add_u32 v7, 0x10000, v6",
    ], 1)
    at(173, lambda: a.wait_vm("T"), ex)
    at(205, lambda: a.e("v_bfe_u32 v1, v0, 2, 7"), ex)
    at(207, lambda: a.vmem("buffer_load_dword v1, v1, s[8:11], s56 offen sc1", "R2"), ex)
    run(NB, NG + 40, NG + 40, ex)
    stamp(a, 12)
    a.wait_vm("R2")
    for i in range(16): a.e(f"v_mul_f32 v{64+i}, v1, v{64+i}")
    a.e(f"v_mov_b32 v32, {fx(GC2)}")
    for l in interleave([gelu_ops(64 + i, 33 + i, 32) for i in range(16)]): a.e(l)
    for i in range(8):
        a.e(f"v_cvt_pk_bf16_f32 v{64+i}, v{64+2*i}, v{65+2*i}")
    for i in range(8):
        a.e(f"v_cndmask_b32 v{64+i}, 0, v{64+i}, vcc")
    for rh in range(2):
        a.e(f"buffer_store_dwordx4 v[{64+4*rh}:{67+4*rh}], v2, s[8:11], s32 offen offset:{rh*1024}{SC}")
    stamp_store(a, 1, vb=96)
    a.e("s_endpgm")
    a.label("Ll1_pk")
    a.vm, a.lg, a.hist = list(save[0]), list(save[1]), list(save[2])
    ex = {}
    spread(ex, NB, [
        "s_sub_u32 s25, s2, 160",
        "s_sub_u32 s26, s25, 42",
        "s_cmp_ge_u32 s25, 42\ns_cselect_b32 s54, s54, 0\ns_cselect_b64 s[56:57], -1, 0\ns_cselect_b32 s26, s26, 0",
        "v_lshrrev_b32 v1, 6, v0",
        "v_mul_u32_u24 v1, 3456, v1",
        "v_and_b32 v7, 0x30, v0",
        "v_add_u32 v1, v1, v7",
        f"s_mul_i32 s30, s24, {80*3456}", "s_lshl_b32 s27, s26, 6", "s_add_u32 s30, s30, s27",
        "s_mul_i32 s59, s24, 5120",
        "s_sub_u32 s27, s25, 64",
        f"s_cmp_ge_u32 s25, 64\ns_cselect_b64 s[44:45], s[48:49], s[44:45]\ns_cselect_b32 s46, s50, s46\ns_cselect_b32 s27, s27, s25\ns_cselect_b32 s28, 54, 128\ns_cselect_b32 s61, {WS_W4P-WS_WOP}, 0",
        "s_mul_i32 s60, s27, 81920", "s_add_u32 s60, s60, s59",
        "s_mul_i32 s28, s28, s24", "s_lshl_b32 s27, s27, 1", "s_add_u32 s28, s28, s27", "s_mul_i32 s28, s28, 5120",
        "s_add_u32 s61, s61, s28", f"s_add_u32 s61, s61, {WS_WOP}",
        "s_mul_i32 s27, s26, 52", "s_lshr_b32 s27, s27, 8",
        "s_mul_i32 s28, s27, 195", "s_add_u32 s28, s28, s26",
        "s_mul_i32 s27, s24, 25", "s_add_u32 s28, s28, s27", "s_lshl_b32 s28, s28, 10", f"s_add_u32 s32, s28, {WS_W3P}",
        "v_lshrrev_b32 v7, 9, v0", "v_lshlrev_b32 v6, 8, v7", "v_and_b32 v2, 0xc0, v0", "v_add_u32 v6, v6, v2",
        "v_bfe_u32 v2, v0, 8, 1", "v_lshl_add_u32 v6, v2, 5, v6", "v_bfe_u32 v2, v0, 4, 2", "v_lshl_add_u32 v6, v2, 3, v6",
        "v_add_u32 v6, s59, v6",
        "v_lshlrev_b32 v7, 4, v7", "v_bfe_u32 v2, v0, 8, 1", "v_lshl_add_u32 v7, v2, 2, v7", "v_bfe_u32 v2, v0, 6, 2", "v_add_u32 v7, v7, v2",
        "v_mul_u32_u24 v7, 1280, v7", "v_bfe_u32 v2, v0, 4, 2", "v_lshl_add_u32 v7, v2, 3, v7",
        "s_mul_i32 s27, s24, 160", "s_add_u32 s27, s27, 40960", "v_add_u32 v7, s27, v7",
    ], 2)
    def dB(i):
        a.e(f"s_add_u32 m0, s59, {i*1024}")
        a.e(f"s_add_u32 s33, s30, {i*16*3456}")
        a.vmem(f"buffer_load_dwordx4 v1, s[52:55], s33 offen lds", "PB")
    def dA(u, i):
        a.e(f"s_add_u32 m0, s59, {40960*(u+1) + i*1024}")
        a.e(f"s_add_u32 s33, s60, {40960*u + i*1024}")
        a.vmem(f"buffer_load_dwordx4 v0, s[44:47], s33 offen{NP} lds", "PA")
    for i in range(5):
        at(165 + 2 * i, (lambda i=i: dB(i)), ex)
        at(197 + 2 * i + (i > 0) * 8, (lambda i=i: dA(0, i)), ex)
        at(229 + 2 * i, (lambda i=i: dA(1, i)), ex)
    at(216, lambda: a.wait_vm("PB"), ex)
    for i in range(5):
        at(216 + i, (lambda i=i: (a.ds(f"ds_read_b64_tr_b16 v[{64+4*i}:{65+4*i}], v6 offset:{i*1024}", "RB"),
                                  a.ds(f"ds_read_b64_tr_b16 v[{66+4*i}:{67+4*i}], v6 offset:{i*1024+512}", "RB"))), ex)
    at(226, lambda: a.wait_lg("RB"), ex)
    def stB(i):
        a.e("s_mov_b64 exec, s[56:57]")
        a.vmem(f"buffer_store_dwordx4 v[{64+4*i}:{67+4*i}], v0, s[8:11], s32 offen{SC}", "ST")
        a.e("s_mov_b64 exec, -1")
        a.e("s_add_u32 s32, s32, 5120")
    for i in range(5): at(226 + 2 * i, (lambda i=i: stB(i)), ex)
    spread(ex, 238, [f"v_dot2_f32_bf16 v84, v{64+i}, s58, {'0' if i==0 else 'v84'}" for i in range(20)] +
           ["v_lshrrev_b32 v86, 2, v0", "v_add_u32 v86, s59, v86"], 1)
    at(262, lambda: a.ds("ds_write_b32 v86, v84", "WB"), ex)
    run(NB, NG + 16, NG, ex)
    a.wait_vm("PA")
    a.wait_lg0()
    a.e("s_barrier")
    stamp(a, 12)
    a.e("s_cmp_ge_u32 s25, 91")
    a.e("s_cbranch_scc1 Ll1_pk2")
    for u in range(2):
        for i in range(5):
            r = 64 + 20 * u + 4 * i
            a.e(f"ds_read_b64_tr_b16 v[{r}:{r+1}], v7 offset:{40960*u + 32*i}")
            a.e(f"ds_read_b64_tr_b16 v[{r+2}:{r+3}], v7 offset:{40960*u + 32*i + 10240}")
        if u == 0: a.e("s_waitcnt lgkmcnt(4)")
    for k in range(10):
        r = 64 + 4 * k
        if k == 0: a.e("s_waitcnt lgkmcnt(10)")
        if k == 5: a.e("s_waitcnt lgkmcnt(0)")
        if k % 4 == 0 and k: a.e("s_add_u32 s61, s61, 4096")
        a.e(f"buffer_store_dwordx4 v[{r}:{r+3}], v0, s[8:11], s61 offen offset:{(k%4)*1024}{SC}")
    a.label("Ll1_pk2")
    a.hist = []
    a.e("s_cmp_lg_u32 s24, 7")
    a.e("s_cbranch_scc1 Ll1_pk3")
    a.e("s_cmp_lt_u32 s25, 42")
    a.e("s_cbranch_scc1 Ll1_pk3")
    a.e("v_lshrrev_b32 v6, 2, v0")
    for w in range(8): a.e(f"ds_read_b32 v{8+w}, v6 offset:{5120*w}")
    a.e("s_waitcnt lgkmcnt(0)")
    for w in range(1, 8): a.e(f"v_add_f32 v8, v8, v{8+w}")
    a.e("v_mov_b32 v9, v8")
    a.e("v_permlane32_swap_b32 v9, v8")
    a.e("v_add_f32 v8, v8, v9")
    a.e("s_lshl_b32 s27, s26, 7")
    a.e(f"s_add_u32 s27, s27, {WS_CS3}")
    a.e("s_mov_b32 exec_hi, 0")
    a.e(f"buffer_store_dword v8, v6, s[8:11], s27 offen{SC}")
    a.e("s_mov_b64 exec, -1")
    a.label("Ll1_pk3")
    stamp_store(a, 1, vb=108)
    a.label("Ll1_end")
    a.e("s_endpgm")
    print("l1 auto nops:", a.nnop)
    return Kern("l1_kernel", grid, 512, 163840, a.text(), 256, 128, 100)
```

```python
from common import *
from k_l1 import spin_wait

S_, Q_, NM, P_, O_, FR = 16, 80, 112, 128, 144, 208
NF = 8
VB, VL0, VL1, VMX, VQ, VNEG, VG, VT0, VT1 = 7, 8, 9, 10, 11, 12, 13, 14, 15
VG2 = 0
THR = 8.0
SC = " sc1"
qpos = [2, 0, 1, 3, 4]
XB = [O_, O_ + 32, NM, Q_, O_]
T5A, T5B = 1, 3
KVN = [int(x) for x in os.environ.get('KVN', '58,86,109').split(',')]
PRIO = int(os.environ.get("PRIO", "1"))

def mf(a, d, A, B, c):
    a.e(f"v_mfma_f32_32x32x16_bf16 v[{d}:{d+15}], v[{A}:{A+3}], v[{B}:{B+3}], {c}")
def rng16(d): return f"v[{d}:{d+15}]"

def rot(a, sW, sX, wbase, wstep, xbase, p, k="s31"):
    a.e(f"s_mul_i32 s{sW+p}, {k}, {wstep}")
    a.e(f"s_add_u32 s{sW+p}, s{sW+p}, {wbase}")
    a.e(f"s_lshl_b32 s{sX+p}, {k}, 13")
    a.e(f"s_add_u32 s{sX+p}, s{sX+p}, {xbase}")
    a.e(f"s_add_u32 {k}, {k}, 1")
    a.e(f"s_cmp_eq_u32 {k}, 5")
    a.e(f"s_cselect_b32 {k}, 0, {k}")

def ldx(a, st, i):
    r = XB[st] + 4 * i
    a.vmem(f"buffer_load_dwordx4 v[{r}:{r+3}], v{VG if i < 4 else VG2}, s[8:11], s{45+st} offen offset:{(i%4)*1024}", ("X", st, i // 4))
def ldw(a, st, g):
    a.e(f"s_add_u32 m0, s35, {qpos[st]*32768 + g*8192}")
    a.e(f"s_add_u32 s31, s{40+st}, {g*32*8192}")
    a.vmem(f"buffer_load_dwordx4 v3, s[4:7], s31 offen lds", ("W", st, g // 2))
def touchx(a, st):
    a.e("s_mov_b64 exec, 0xffff")
    a.vmem(f"buffer_load_dword v{VMX}, v9, s[8:11], s{45+st} offen", ("T", st))
    a.e("s_mov_b64 exec, -1")
def touch0(a):
    a.e("v_mul_u32_u24 v10, 52, v2")
    a.e("v_lshrrev_b32 v10, 8, v10")
    a.e(f"v_mul_u32_u24 v10, {163840-640}, v10")
    a.e("v_lshl_add_u32 v12, v2, 7, v10")
    a.e("v_and_b32 v11, 1, v2")
    a.e("v_lshlrev_b32 v11, 7, v11")
    a.e("v_bfe_u32 v10, v2, 1, 3")
    a.e("v_lshl_add_u32 v10, v10, 13, v11")
    a.e("v_cmp_le_u32 vcc, 32, v2")
    a.e("v_cndmask_b32 v12, v12, v10, vcc")
    a.e("v_bfe_u32 v10, v2, 1, 1")
    a.e("v_lshl_add_u32 v11, v10, 13, v11")
    a.e("v_bfe_u32 v10, v2, 2, 2")
    a.e("v_lshl_add_u32 v11, v10, 20, v11")
    a.e("v_cmp_le_u32 vcc, 48, v2")
    a.e("v_cndmask_b32 v12, v12, v11, vcc")
    a.e("s_lshl_b32 s31, s39, 3")
    a.e("s_add_u32 s31, s31, s24")
    a.e("s_mul_i32 s20, s31, 640")
    a.e("s_lshr_b32 s21, s31, 5")
    a.e("s_and_b32 s22, s2, 7")
    a.e("s_lshl_b32 s22, s22, 3")
    a.e("s_add_u32 s21, s21, s22")
    a.e("s_mul_i32 s21, s21, 40960")
    a.e("s_and_b32 s31, s31, 31")
    a.e("s_lshl_b32 s31, s31, 8")
    a.e("s_add_u32 s21, s21, s31")
    a.e(f"s_add_u32 s21, s21, {WS_HS}")
    a.e("s_lshl_b32 s22, s26, 3")
    a.e("s_add_u32 s22, s22, s24")
    a.e("s_lshl_b32 s22, s22, 14")
    a.e("s_lshl_b32 s31, s25, 8")
    a.e("s_add_u32 s22, s22, s31")
    a.e(f"s_add_u32 s22, s22, {1<<20}")
def msk(lo, hi): return ((1 << hi) - 1) ^ ((1 << lo) - 1)
def touch5(a, s0, s1):
    a.e(f"s_mov_b64 exec, {hex(msk(5*s0, 5*s1))}")
    a.vmem(f"buffer_load_dword v{VMX}, v12, s[12:15], s20 offen", "T0")
    a.e("s_mov_b32 exec_lo, 0")
    a.e(f"s_mov_b32 exec_hi, {hex(msk(2*s0, 2*s1))}")
    a.vmem(f"buffer_load_dword v{VMX}, v12, s[8:11], s21 offen", "T0")
    a.e("s_mov_b64 exec, -1")
def touchq(a, s0, s1):
    a.e("s_mov_b32 exec_lo, 0")
    a.e(f"s_mov_b32 exec_hi, {hex(msk(12+4*s0, 12+4*s1))}")
    a.vmem(f"buffer_load_dword v{VMX}, v12, s[4:7], s22 offen", "T0")
    a.e("s_mov_b64 exec, -1")
def qbatch(a):
    return ([lambda g=g: ldw(a, 0, g) for g in (0, 1)] + [lambda i=i: ldx(a, 0, i) for i in range(4)],
            [lambda g=g: ldw(a, 0, g) for g in (2, 3)] + [lambda i=i: ldx(a, 0, i) for i in range(4, 8)],
            [lambda: touchx(a, 1), lambda: touchx(a, 2)])

def l2_kernel(D=7):
    a = Asm()
    a.auto = True
    grid = 256
    stamp_init(a)
    load_srds(a, [(4, "wq"), (8, "ws"), (12, "w2"), (16, "dbg")])
    a.e("v_lshrrev_b32 v1, 6, v0")
    a.e("v_and_b32 v2, 63, v0")
    a.e("v_readfirstlane_b32 s24, v1")
    a.e(f"s_cmp_ge_u32 s2, {grid}")
    a.e("s_cbranch_scc1 Lat_end")
    a.e("s_and_b32 s25, s2, 7")
    a.e("s_lshl_b32 s25, s25, 2")
    a.e("s_bfe_u32 s39, s2, 0x20003")
    a.e("s_add_u32 s25, s25, s39")
    a.e("s_lshr_b32 s26, s2, 5")
    a.e("s_sub_u32 s31, 15, s26")
    a.e("s_sub_u32 s32, 7, s24")
    a.e("s_cmp_lt_u32 s24, 4")
    a.e("s_cselect_b32 s31, s31, s26")
    a.e("s_cselect_b32 s32, s24, s32")
    a.e("s_lshl_b32 s27, s31, 2")
    a.e("s_add_u32 s27, s27, s32")
    a.e("s_lshr_b32 s28, s27, 1")
    a.e("v_bfe_u32 v14, v2, 2, 2")
    a.e("v_and_b32 v15, 3, v2")
    a.e("v_lshrrev_b32 v1, 4, v2")
    a.e("v_lshlrev_b32 v4, 4, v15")
    a.e("v_lshl_add_u32 v4, v1, 6, v4")
    a.e("v_lshl_add_u32 v3, v14, 13, v4")
    a.e(f"v_lshlrev_b32 v{VG}, 4, v2")
    a.e(f"v_add_u32 v{VG2}, 0x1000, v{VG}")
    a.e("s_mul_i32 s33, s27, 40960")
    a.e(f"s_add_u32 s33, s33, {WS_XN}")
    a.e("s_lshl_b32 s34, s24, 15")
    a.e("s_lshl_b32 s31, s25, 8")
    a.e("s_add_u32 s34, s34, s31")
    a.e("s_lshl_b32 s35, s24, 10")
    a.e("s_mov_b32 s38, 0")
    a.e("s_lshl_b32 s31, s39, 11")
    a.e("v_lshlrev_b32 v9, 7, v2")
    a.e("v_add_u32 v9, s31, v9")
    rot(a, 40, 45, "s34", 1 << 20, "s33", 0, "s38")
    a.e("s_lshr_b32 s39, s2, 3")
    a.e("s_cmp_ge_u32 s39, 22")
    a.e("s_waitcnt lgkmcnt(0)")
    a.e("s_cbranch_scc1 Lat_s5")
    def misc():
        a.e("v_lshrrev_b32 v1, 5, v2")
        a.e("v_lshlrev_b32 v4, 10, v1")
        a.e("v_lshl_add_u32 v4, v14, 6, v4")
        a.e("v_bfe_u32 v14, v2, 4, 1")
        a.e("v_lshl_add_u32 v4, v14, 5, v4")
        a.e("v_lshl_add_u32 v4, v15, 3, v4")
        a.e("v_add_u32 v5, 0x10000, v4")
        a.e("v_add_u32 v6, 0x20000, v4")
        a.e(f"v_add_u32 v{VB}, 0x10000, v{VG}")
        a.e("s_and_b32 s31, s32, 1")
        a.e("s_lshl_b32 s31, s31, 5")
        a.e(f"v_and_b32 v{VQ}, 31, v2")
        a.e(f"v_add_u32 v{VQ}, s31, v{VQ}")
        a.e(f"v_lshlrev_b32 v15, 2, v1")
        a.e(f"v_sub_u32 v{VQ}, v{VQ}, v15")
        a.e("v_and_b32 v15, 15, v2")
        a.e("v_lshlrev_b32 v15, 4, v15")
        a.e("v_lshl_add_u32 v15, v14, 10, v15")
        a.e("v_lshl_add_u32 v1, v1, 8, v15")
        a.e("s_lshl_b32 s29, s25, 20")
        a.e("s_lshr_b32 s36, s27, 1")
        a.e("s_lshl_b32 s36, s36, 7")
        a.e("s_lshl_b32 s31, s25, 2")
        a.e("s_add_u32 s36, s36, s31")
        a.e("s_lshl_b32 s36, s36, 12")
        a.e("s_and_b32 s31, s27, 1")
        a.e("s_lshl_b32 s31, s31, 11")
        a.e("s_add_u32 s36, s36, s31")
        a.e(f"s_add_u32 s36, s36, {WS_CTX}")
        a.e("s_and_b32 s37, s24, 3")
        a.e("s_lshl_b32 s37, s37, 13")
        a.e("s_lshr_b32 s34, s37, 1")
    b1, b2, b3 = qbatch(a)
    for f in b1: f()
    for p in range(1, 3): rot(a, 40, 45, "s34", 1 << 20, "s33", p, "s38")
    a.e("s_barrier")
    for f in b2: f()
    canon = list(a.vm)
    touch0(a)
    touchq(a, 1, 2); touchx(a, 1); touch5(a, T5A, T5B)
    for p in range(3, 5): rot(a, 40, 45, "s34", 1 << 20, "s33", p, "s38")
    misc()
    assert len(a.vm) == len(canon) + 4
    canon0 = list(canon)
    canon = canon + ["Y"] * 4
    a.vm = list(canon)
    a.label("Lat_join")
    a.e("s_cmp_ge_u32 s24, 4")
    a.e("s_cbranch_scc1 Lat_B")
    a.hist = []
    body(a, True, D)
    a.label("Lat_B")
    a.vm, a.lg = list(canon), []
    a.hist = []
    body(a, False, D)
    a.label("Lat_s5")
    a.vm, a.lg, a.hist = [], [], []
    X5 = [S_ + 32, NM, Q_]
    a.e("s_sub_u32 s60, s39, 22")
    a.e("s_and_b32 s61, s2, 7")
    a.e("s_lshl_b32 s61, s61, 1")
    a.e("s_sub_u32 s31, s60, 5")
    a.e("s_add_u32 s62, s61, 1")
    a.e("s_cmp_ge_u32 s60, 5")
    a.e("s_cselect_b32 s60, s31, s60")
    a.e("s_cselect_b32 s61, s62, s61")
    a.e("s_lshl_b32 s62, s61, 2")
    a.e("s_and_b32 s31, s24, 3")
    a.e("s_add_u32 s62, s62, s31")
    a.e("s_mul_i32 s63, s62, 40960")
    a.e(f"s_add_u32 s30, s63, {WS_HS}")
    a.e(f"s_mul_i32 s29, s24, {4*1280}")
    a.e("s_lshl_b32 s31, s60, 8")
    a.e("s_add_u32 s29, s29, s31")
    a.e("v_mul_u32_u24 v8, 1280, v14")
    a.e("v_add_u32 v8, v8, v4")
    a.e("s_mov_b32 s36, 0")
    rot(a, 50, 55, "s29", 128 * 1280, "s30", 0, "s36")
    def ldx5(st, i):
        r = X5[st % 3] + 4 * i
        a.vmem(f"buffer_load_dwordx4 v[{r}:{r+3}], v{VG if i < 4 else VG2}, s[8:11], s{55+st} offen offset:{(i%4)*1024}", ("X5", st, i // 4))
    def ldw5(st, g):
        a.e(f"s_add_u32 m0, s35, {qpos[st]*32768 + g*8192}")
        a.e(f"s_add_u32 s31, s{50+st}, {g*32*1280}")
        a.vmem(f"buffer_load_dwordx4 v8, s[12:15], s31 offen lds", ("W5", st, g // 2))
    for g in (0, 1): ldw5(0, g)
    for i in range(4): ldx5(0, i)
    rot(a, 50, 55, "s29", 128 * 1280, "s30", 1, "s36")
    a.e("s_barrier")
    for g in (2, 3): ldw5(0, g)
    for i in range(4, 8): ldx5(0, i)
    touch0(a)
    touchq(a, 1, 2); touch5(a, T5A, T5B)
    a.e("s_barrier")
    for g in range(4): ldw5(1, g)
    for i in range(8): ldx5(1, i)
    for p in range(2, 5): rot(a, 50, 55, "s29", 128 * 1280, "s30", p, "s36")
    for p in range(1, 5): rot(a, 40, 45, "s34", 1 << 20, "s33", p, "s38")
    misc()
    a.e("s_lshr_b32 s31, s24, 2")
    a.e("s_lshl_b32 s30, s31, 9")
    for r in (4, 5, 6): a.e(f"v_add_u32 v{r}, s30, v{r}")
    a.e("s_lshl_b32 s60, s60, 1")
    a.e("s_add_u32 s60, s60, s31")
    a.e("s_lshl_b32 s31, s60, 12")
    a.e("s_add_u32 s63, s63, s31")
    a.e(f"s_add_u32 s33, s63, {WS_XN}")
    a.e(f"s_add_u32 s63, s63, {WS_X1}")
    a.e(f"s_mul_i32 s62, s62, {32*80}")
    a.e("s_lshl_b32 s60, s60, 3")
    a.e("s_add_u32 s62, s62, s60")
    a.e(f"s_add_u32 s62, s62, {WS_ST1}")
    seq = [(st, ks, db) for st in range(5) for ks in range(8) for db in range(2)]
    DQ = 6
    def rd5(n):
        st, ks, db = seq[n]
        if db == 0 and (ks == 0 or (st == 0 and ks == 4)):
            a.wait_vm(("W5", st, 1 if (st or ks) else 0))
            a.e("s_barrier")
        f = FR + 4 * (n % NF)
        p = qpos[st]
        base = [4, 4, 5, 5, 6][p]
        off = (p % 2) * 32768 + ks * 4096 + db * 256
        a.ds(f"ds_read_b64_tr_b16 v[{f}:{f+1}], v{base} offset:{off}", ("F", n))
        a.ds(f"ds_read_b64_tr_b16 v[{f+2}:{f+3}], v{base} offset:{off+2048}", ("F", n))
    ev = {}
    def at(n, fn): ev.setdefault(n, []).append(fn)
    for st in range(2, 5):
        for g in range(4): at(16 * (st - 2) + 1 + g, (lambda st=st, g=g: ldw5(st, g)))
        for i in range(8): at(16 * (st - 2) + 5 + i, (lambda st=st, i=i: ldx5(st, i)))
    for i in range(4):
        at(45 + i, (lambda i=i: a.vmem(f"buffer_load_dwordx4 v[{240+4*i}:{243+4*i}], v{VG}, s[8:11], s33 offen offset:{i*1024}", "RES")))
    b1, b2, b3 = qbatch(a)
    at(0, lambda: touch5(a, T5B, 5)); at(0, lambda: touchq(a, 2, 3))
    at(14, lambda: touchq(a, 3, 4)); at(30, lambda: touchq(a, 4, 5))
    at(31, lambda: touchx(a, 0))
    at(49, b3[0])
    for k, f in enumerate(b1 + b2): at(52 + 2 * k, f)
    for n in range(DQ): rd5(n)
    for n, (st, ks, db) in enumerate(seq):
        for fn in ev.get(n, []): fn()
        if n + DQ < len(seq): rd5(n + DQ)
        if db == 0 and ks % 4 == 0: a.wait_vm(("X5", st, ks // 4))
        if db == 0 and ks == 0 and st % 2 == 0: stamp(a, 10 + st // 2)
        a.wait_lg(("F", n))
        d = S_ + 16 * db
        mf(a, d, FR + 4 * (n % NF), X5[st % 3] + 4 * ks, "0" if (st == 0 and ks == 0) else rng16(d))
    for r in (4, 5, 6): a.e(f"v_subrev_u32 v{r}, s30, v{r}")
    a.e("v_mov_b32 v8, 0xffff0000")
    a.e(f"v_and_b32 v{VT0}, 31, v2")
    a.e(f"v_mul_u32_u24 v{VT0}, 80, v{VT0}")
    a.wait_vm("RES")
    T = FR
    for i in range(16):
        a.e(f"v_lshlrev_b32 v{T+2*i}, 16, v{240+i}")
        a.e(f"v_and_b32 v{T+2*i+1}, v8, v{240+i}")
    for i in range(32): a.e(f"v_add_f32 v{S_+i}, v{S_+i}, v{T+i}")
    for i in range(16): a.e(f"v_cvt_pk_bf16_f32 v{240+i}, v{S_+2*i}, v{S_+2*i+1}")
    for i in range(4):
        a.e(f"buffer_store_dwordx4 v[{240+4*i}:{243+4*i}], v{VG}, s[8:11], s63 offen offset:{i*1024}{SC}")
    U = S_ + 32
    for k in range(2):
        a.e(f"v_add_f32 v{U+2*k}, v{S_+2*k}, v{S_+2*k+1}")
        a.e(f"v_mul_f32 v{U+2*k+1}, v{S_+2*k}, v{S_+2*k}")
        a.e(f"v_fmac_f32 v{U+2*k+1}, v{S_+2*k+1}, v{S_+2*k+1}")
    for i in range(4, 32):
        k = i & 1
        a.e(f"v_add_f32 v{U+2*k}, v{U+2*k}, v{S_+i}")
        a.e(f"v_fmac_f32 v{U+2*k+1}, v{S_+i}, v{S_+i}")
    a.e(f"v_add_f32 v{U}, v{U}, v{U+2}")
    a.e(f"v_add_f32 v{U+1}, v{U+1}, v{U+3}")
    a.e(f"v_mov_b32 v{U+2}, v{U}")
    a.e(f"v_mov_b32 v{U+3}, v{U+1}")
    a.e(f"v_permlane32_swap_b32 v{U+2}, v{U}")
    a.e(f"v_permlane32_swap_b32 v{U+3}, v{U+1}")
    a.e(f"v_add_f32 v{U}, v{U}, v{U+2}")
    a.e(f"v_add_f32 v{U+1}, v{U+1}, v{U+3}")
    a.e("s_mov_b32 exec_hi, 0")
    a.e(f"buffer_store_dwordx2 v[{U}:{U+1}], v{VT0}, s[8:11], s62 offen{SC}")
    a.e("s_mov_b64 exec, -1")
    assert a.vm[-len(canon0):] == canon0, (a.vm, canon0)
    a.nop(2)
    a.e("s_branch Lat_join")
    a.label("Lat_end")
    a.e("s_endpgm")
    print("l2 auto nops:", a.nnop)
    return Kern("l2_kernel", grid, 512, 163840, a.text(), 256, 256, 100)

def body(a, isA, D):
    T = "A" if isA else "B"
    isB = not isA
    seq = [(st, ks, db) for st in range(5) for ks in range(8) for db in range(4)]
    DQ = 6
    def rdq(n):
        st, ks, db = seq[n]
        if db == 0 and (ks == 0 or (st == 0 and ks == 4)):
            a.wait_vm(("W", st, 1 if (st or ks) else 0))
            a.e("s_barrier")
            if st == 1 and isA:
                a.e("s_cmp_lt_u32 s39, 22")
                a.e("s_cbranch_scc1 Lat_nf")
                a.e("s_cmp_lg_u32 s24, 0")
                a.e("s_cbranch_scc1 Lat_nf")
                a.e("s_lshl_b32 s61, s61, 2")
                a.e("v_mov_b32 v8, 1")
                a.e(f"v_mov_b32 v{VT0}, 0")
                a.e("s_mov_b64 exec, 1")
                a.e(f"buffer_atomic_add v8, v{VT0}, s[16:19], s61 offen sc1")
                a.e("s_mov_b64 exec, -1")
                a.label("Lat_nf")
        f = FR + 4 * (n % NF)
        p = qpos[st]
        base = [4, 4, 5, 5, 6][p]
        off = (p % 2) * 32768 + ks * 4096 + db * 256
        a.ds(f"ds_read_b64_tr_b16 v[{f}:{f+1}], v{base} offset:{off}", ("F", n))
        a.ds(f"ds_read_b64_tr_b16 v[{f+2}:{f+3}], v{base} offset:{off+2048}", ("F", n))
    ev = {}
    def at(n, fn): ev.setdefault(n, []).append(fn)
    for st in range(1, 5):
        n0 = [0, 0, 28, 56, 84][st]
        for g in range(4): at(n0 + 1 + 2 * g, (lambda st=st, g=g: ldw(a, st, g)))
        for i in range(8): at(n0 + 9 + 2 * i, (lambda st=st, i=i: ldx(a, st, i)))
    at(0, lambda: touch5(a, T5B, 5)); at(0, lambda: touchq(a, 2, 3)); at(0, lambda: touchx(a, 2))
    at(25, lambda: touchq(a, 3, 4)); at(53, lambda: touchq(a, 4, 5))
    at(25, lambda: touchx(a, 3)); at(53, lambda: touchx(a, 4))
    def dma(tag, m0, goff, i, wsh):
        a.e(f"s_add_u32 m0, {wsh}, {m0 + (i//4)*4096}")
        if i % 4 == 0:
            a.e(f"s_add_u32 s23, s29, {goff + (i//4)*4096}")
            a.e(f"s_add_u32 s23, s23, {wsh}")
        a.vmem(f"buffer_load_dwordx4 v{VG}, s[8:11], s23 offen offset:{(i%4)*1024} lds", tag)
    if isB:
        for i in range(4): at(KVN[0] + 2 * i, (lambda i=i: dma(("KV", -1), 65536 + 16384, 0, i, "s34")))
        for i in range(8): at(KVN[1] + 2 * i, (lambda i=i: dma(("KV", 0), 0, 16384, i, "s37")))
        for i in range(8): at(KVN[2] + 2 * i, (lambda i=i: dma(("KV", 1), 32768, 16384 + 32768, i, "s37")))
    for i in range(16): at(100 + i, (lambda i=i: a.e(f"v_mov_b32 v{NM+i}, 0")))
    for i in range(32): at(66 + i, (lambda i=i: a.e(f"v_mov_b32 v{O_+32+i}, 0")))
    for n in range(DQ): rdq(n)
    for n, (st, ks, db) in enumerate(seq):
        for fn in ev.get(n, []): fn()
        if n + DQ < len(seq): rdq(n + DQ)
        if db == 0 and ks % 4 == 0: a.wait_vm(("X", st, ks // 4))
        if ks == 0 and db == 0: stamp(a, 1 + st)
        a.wait_lg(("F", n))
        f = FR + 4 * (n % NF)
        d = S_ + 16 * db
        mf(a, d, f, XB[st] + 4 * ks, "0" if (st == 0 and ks == 0) else rng16(d))
    stamp(a, 6)
    a.e("s_mov_b32 s38, 0x10000")
    if isB:
        a.e(f"s_add_u32 s29, s29, {16384 + 2*32768}")
        a.e(f"s_add_u32 s29, s29, s37")
        a.e("s_lshl_b32 s31, s26, 1")
        a.e("s_add_u32 s31, s31, s28")
        a.e("s_sub_u32 s52, 29, s31")
        a.wait_vm(("KV", -1))
    a.e("s_barrier")
    def rdK(n):
        f = FR + 4 * (n % NF)
        a.ds(f"ds_read_b128 v[{f}:{f+3}], v{VB} offset:{16384 + n*1024}", ("F", n % 32))
    def rdV(n):
        f = FR + 4 * (n % NF)
        ks, db = (n - 16) // 4, (n - 16) % 4
        a.ds(f"ds_read_b128 v[{f}:{f+3}], v{VB} offset:{(db*4+ks)*1024}", ("F", n % 32))
    def rdK2(n):
        f = FR + 4 * (n % NF)
        a.ds(f"ds_read_b128 v[{f}:{f+3}], v{VB} offset:{16384 + n*1024}", ("G", n))
    def slot_pre():
        if isB: a.e("s_add_u32 s30, s38, s37")
        a.e("s_add_u32 s38, s38, 0x8000")
        a.e("s_cmp_eq_u32 s38, 0x18000")
        a.e("s_cselect_b32 s38, 0, s38")
    def slot_post():
        a.e(f"v_add_u32 v{VB}, s38, v{VG}")
    def kvdma(i):
        if i % 4 == 0:
            a.e(f"s_add_u32 m0, s30, {(i//4)*4096}")
            if i: a.e(f"s_add_u32 s29, s29, 4096")
        a.vmem(f"buffer_load_dwordx4 v{VG}, s[8:11], s29 offen offset:{(i%4)*1024} lds", ("KV", "new"))
        if i == 7: a.e(f"s_add_u32 s29, s29, {32768-4096}")
    for n in range(D): rdK(n)
    if isB:
        a.e("s_and_b32 s61, s2, 7")
        a.e("s_lshl_b32 s61, s61, 1")
        a.e("s_sub_u32 s31, s39, 11")
        a.e("s_add_u32 s62, s61, 1")
        a.e("s_cmp_ge_u32 s39, 11")
        a.e("s_cselect_b32 s60, s31, s39")
        a.e("s_cselect_b32 s61, s62, s61")
        a.e("s_and_b32 s31, s24, 3")
        a.e("s_mul_i32 s53, s31, 5120")
        a.e(f"s_mul_i32 s54, s60, {200*1024}")
        a.e("s_add_u32 s54, s54, s53")
        a.e(f"s_add_u32 s54, s54, {WS_W3P}")
        a.e("s_add_u32 s53, s53, 0x18000")
        a.e("s_cmp_lt_u32 s39, 22")
        a.e("s_cselect_b64 s[20:21], -1, 0")
    def w3dma(g, i, tag="W3"):
        a.e(f"s_add_u32 m0, s53, {(g%3)*20480 + (i//4)*4096}")
        a.e(f"s_add_u32 s31, s54, {g*20480 + (i//4)*4096}")
        a.vmem(f"buffer_load_dwordx4 v{VG}, s[8:11], s31 offen offset:{(i%4)*1024} lds", tag)
    for j in range(32):
        a.e(f"v_cvt_pk_bf16_f32 v{Q_+j}, v{S_+2*j}, v{S_+2*j+1}")
    a.e(f"v_mov_b32 v{VL0}, 0")
    a.e(f"v_mov_b32 v{VL1}, 0")
    a.e(f"v_mov_b32 v{VNEG}, {fx(-1e30)}")
    def maskinit(buf):
        for r in range(32):
            c = 32 * (r // 16) + 8 * ((r % 16) // 4) + (r % 4)
            sp = 44 + 2 * (r % 4)
            a.e(f"v_cmp_le_i32 s[{sp}:{sp+1}], {c}, v{VQ}")
            if r >= 3:
                q = r - 3; sq = 44 + 2 * (q % 4)
                a.e(f"v_cndmask_b32 v{buf+q}, v{VNEG}, v{NM}, s[{sq}:{sq+1}]")
        for q in range(29, 32):
            sq = 44 + 2 * (q % 4)
            a.e(f"v_cndmask_b32 v{buf+q}, v{VNEG}, v{NM}, s[{sq}:{sq+1}]")
    def qk0(masked):
        for n in range(16):
            if n + D < 16: rdK(n + D)
            if n + D == 16:
                slot_pre()
                if isB: a.wait_vm(("KV", 0))
                a.e("s_barrier")
                slot_post()
            if n + D >= 16: rdK2(n + D - 16)
            a.e(f"v_mov_b32 v{O_+2*n}, 0")
            a.e(f"v_mov_b32 v{O_+2*n+1}, 0")
            a.wait_lg(("F", n))
            kb, ds_ = n // 8, n % 8
            d = S_ + 16 * kb
            mf(a, d, FR + 4 * (n % NF), Q_ + 4 * ds_, rng16(d) if (ds_ or masked) else rng16(NM))
    st0 = (list(a.vm), list(a.lg))
    if isB:
        a.e("s_cmp_lg_u32 s28, 0")
        a.e(f"s_cbranch_scc1 Lat{T}_q0")
        maskinit(S_)
        qk0(True)
        a.e(f"s_branch Lat{T}_q1")
        a.label(f"Lat{T}_q0")
        a.vm, a.lg = list(st0[0]), list(st0[1])
    qk0(False)
    a.label(f"Lat{T}_q1")
    a.nop(12)
    def maxops(buf):
        ops = [f"v_max3_f32 v{VMX}, v{buf}, v{buf+1}, v{buf+2}"]
        for k in range(14):
            ops.append(f"v_max3_f32 v{VMX}, v{VMX}, v{buf+3+2*k}, v{buf+4+2*k}")
        ops.append(f"v_max_f32 v{VMX}, v{VMX}, v{buf+31}")
        return ops
    for o in maxops(S_): a.e(o)
    a.e(f"v_mov_b32 v{VT0}, v{VMX}")
    a.e(f"v_permlane32_swap_b32 v{VT0}, v{VMX}")
    a.e(f"v_max_f32 v{VMX}, v{VMX}, v{VT0}")
    for i in range(16): a.e(f"v_sub_f32 v{NM+i}, 0, v{VMX}")
    for i in range(32): a.e(f"v_sub_f32 v{S_+i}, v{S_+i}, v{VMX}")
    if isA and PRIO: a.e(f"s_setprio {PRIO}")
    def entry_state():
        a.lg = [("F", n) for n in range(D)]
        a.vm = [("KV", "next")] * 8 if isB else []
        a.hist = []
    resc = []
    def step(par, masked):
        cur, nxt = S_ + 32 * par, S_ + 32 * (1 - par)
        if masked: maskinit(nxt)
        slots = [[] for _ in range(32)]
        cost = [4 if s % 2 == 0 else 0 for s in range(32)]
        cost[24] += 12; cost[25] += 8; cost[28] += 4; cost[0] += 12
        eslot = {}
        e = 0
        for s in range(32):
            tgt = min(32, -(-32 * (s + 1) // 26))
            while e < tgt:
                slots[s].append(("E", e)); cost[s] += 8; eslot[e] = s; e += 1
        for j in range(16):
            s = eslot[2 * j + 1] + 1
            slots[s].append(("C", j)); cost[s] += 4
        mo = maxops(nxt)
        ms = list(range(10, 17)) + list(range(18, 27))
        for k, o in enumerate(mo):
            slots[ms[k]].append(("M", o)); cost[ms[k]] += 4
        if isB:
            for i in range(8): cost[1 + 2 * i] += 6
        e = 0
        rem = sum(cost) + 32 * 4
        for s in range(32):
            tgt = rem / (32 - s)
            while e < 32 and eslot[e] < s and (cost[s] + 4 <= tgt + 2 or s == 31):
                slots[s].append(("A", e)); cost[s] += 4; e += 1
            rem -= cost[s]
        assert e == 32
        for n in range(32):
            m = n + D
            if m == 31: slot_pre()
            if m < 16: rdK(m)
            elif m < 32: rdV(m)
            else:
                if m == 32:
                    if isB: a.wait_vm(("KV", "next"))
                    a.e("s_barrier")
                    slot_post()
                if not masked: rdK2(m - 32)
            if isB and n % 2 == 1 and n < 16: kvdma(n // 2)
            for k, x in slots[n]:
                if k == "E": a.e(f"v_exp_f32 v{cur+x}, v{cur+x}")
                elif k == "C": a.e(f"v_cvt_pk_bf16_f32 v{P_+x}, v{cur+2*x}, v{cur+2*x+1}")
                elif k == "M": a.e(x)
                else:
                    l = VL0 if x % 2 == 0 else VL1
                    a.e(f"v_add_f32 v{l}, v{l}, v{cur+x}")
            if n == 28: a.e(f"v_cmp_lt_f32 vcc, {fx(THR)}, v{VMX}")
            if n % 2 == 0: a.wait_lg([("F", n), ("F", n + 1)])
            f = FR + 4 * (n % NF)
            if n < 16:
                kb, ds_ = n // 8, n % 8
                d = nxt + 16 * kb
                mf(a, d, f, Q_ + 4 * ds_, rng16(d) if (ds_ or masked) else rng16(NM))
            else:
                ks, db = (n - 16) // 4, (n - 16) % 4
                d = O_ + 16 * db
                mf(a, d, f, P_ + 4 * ks, rng16(d))
        lab = a.newlabel(f"Lat{T}_rs")
        a.e(f"s_cbranch_vccnz {lab}")
        a.label(lab + "r")
        resc.append((lab, nxt))
    def final(par, barrier):
        cur = S_ + 32 * par
        a.lg = []; a.hist = []
        a.vm = [("KV", "next")] * 8 if isB else []
        for m in range(16, 16 + D): rdV(m)
        def grp(g):
            ops = []
            for e in range(8 * g, 8 * g + 8):
                ops.append(f"v_exp_f32 v{cur+e}, v{cur+e}")
            for j in range(4 * g, 4 * g + 4):
                ops.append(f"v_cvt_pk_bf16_f32 v{P_+j}, v{cur+2*j}, v{cur+2*j+1}")
            return ops
        def adds(g):
            return [f"v_add_f32 v{VL0 if e%2==0 else VL1}, v{VL0 if e%2==0 else VL1}, v{cur+e}" for e in range(8 * g, 8 * g + 8)]
        for o in grp(0): a.e(o)
        for n in range(16, 32):
            g = (n - 16) // 4
            if n + D < 32: rdV(n + D)
            if isB and n < 24: kvdma(n - 16)
            if n + D == 32 and barrier:
                if isB:
                    slot_pre()
                    a.wait_vm(("KV", "next"))
                a.e("s_barrier")
            if isB and 26 <= n < 31:
                a.e("s_mov_b64 exec, s[20:21]")
                for k in range(3 * (n - 26), 3 * (n - 25)): w3dma(k // 5, k % 5)
                a.e("s_mov_b64 exec, -1")
            a.wait_lg(("F", n))
            ks, db = (n - 16) // 4, (n - 16) % 4
            d = O_ + 16 * db
            mf(a, d, FR + 4 * (n % NF), P_ + 4 * ks, rng16(d))
            ops = (grp(g + 1) if g < 3 else []) + adds(g)
            k = (n - 16) % 4
            w = -(-len(ops) // 4)
            for o in ops[k * w:(k + 1) * w]: a.e(o)
        a.e(f"s_branch Lat{T}_epi")
    stamp(a, 7)
    if isB:
        a.e("s_cmp_eq_u32 s28, 0")
        a.e(f"s_cbranch_scc1 Lat{T}_f0")
    a.label(f"Lat{T}_loop")
    a.e("s_cmp_eq_u32 s28, 1")
    a.e(f"s_cbranch_scc1 Lat{T}_m0")
    entry_state()
    step(0, False)
    a.e("s_cmp_eq_u32 s28, 2")
    a.e(f"s_cbranch_scc1 Lat{T}_m1")
    entry_state()
    step(1, False)
    a.e("s_sub_u32 s28, s28, 2")
    a.e(f"s_branch Lat{T}_loop")
    a.label(f"Lat{T}_m0")
    stamp(a, 8)
    entry_state()
    step(0, True)
    final(1, isB)
    a.label(f"Lat{T}_m1")
    stamp(a, 8)
    entry_state()
    step(1, True)
    a.label(f"Lat{T}_f0")
    final(0, True)
    for lab, nxt in resc:
        a.label(lab)
        a.hist = []
        a.e(f"v_mov_b32 v{VT0}, v{VMX}")
        a.e(f"v_permlane32_swap_b32 v{VT0}, v{VMX}")
        a.e(f"v_max3_f32 v{VMX}, v{VMX}, v{VT0}, 0")
        a.e(f"v_sub_f32 v{VT0}, 0, v{VMX}")
        a.e(f"v_exp_f32 v{VT0}, v{VT0}")
        for i in range(16): a.e(f"v_sub_f32 v{NM+i}, v{NM+i}, v{VMX}")
        for i in range(32): a.e(f"v_sub_f32 v{nxt+i}, v{nxt+i}, v{VMX}")
        a.e(f"v_mul_f32 v{VL0}, v{VL0}, v{VT0}")
        a.e(f"v_mul_f32 v{VL1}, v{VL1}, v{VT0}")
        for i in range(64): a.e(f"v_mul_f32 v{O_+i}, v{O_+i}, v{VT0}")
        a.nop(2)
        a.e(f"s_branch {lab}r")
    a.label(f"Lat{T}_epi")
    a.hist = []; a.lg = []
    a.vm = [("KV", "next")] * 8 if isB else []
    stamp(a, 9)
    def kvblock():
        a.e("s_cmp_gt_i32 s52, 0")
        a.e("s_cselect_b64 exec, -1, 0")
        a.e("s_sub_u32 s52, s52, 1")
        for i in range(8): kvdma(i)
        a.e("s_mov_b64 exec, -1")
    def endper(extra=()):
        slot_pre()
        a.wait_vm([("KV", "next")] + list(extra))
        a.e("s_barrier")
        a.vm = [("KV", "next") if t == ("KV", "new") else t for t in a.vm]
    if isB:
        a.e("s_lshl_b32 s59, s61, 2")
        a.e("v_mov_b32 v6, 0")
        a.vmem("buffer_load_dword v5, v6, s[16:19], s59 offen sc1", "FL")
        kvblock()
    a.e(f"v_add_f32 v{VL0}, v{VL0}, v{VL1}")
    a.e(f"v_mov_b32 v{VT0}, v{VL0}")
    a.e(f"v_permlane32_swap_b32 v{VT0}, v{VL0}")
    a.e(f"v_add_f32 v{VL0}, v{VL0}, v{VT0}")
    a.e(f"v_rcp_f32 v{VL0}, v{VL0}")
    a.nop(4)
    for db in range(4):
        for j in range(8):
            r = O_ + 16 * db + 2 * j
            a.e(f"v_mul_f32 v{r}, v{r}, v{VL0}")
            a.e(f"v_mul_f32 v{r+1}, v{r+1}, v{VL0}")
            a.e(f"v_cvt_pk_bf16_f32 v{S_+8*db+j}, v{r}, v{r+1}")
        for rh in range(2):
            r = S_ + 8 * db + 4 * rh
            a.vmem(f"buffer_store_dwordx4 v[{r}:{r+3}], v1, s[8:11], s36 offen offset:{rh*512}", "ST")
        if db < 3: a.e("s_add_u32 s36, s36, 4096")
    if isA:
        stamp_store(a, 5)
        a.e("s_endpgm")
        return
    a.e("s_cmp_ge_u32 s39, 22")
    a.e("s_cbranch_scc1 LatB_ldt")
    ACC, XR, NX, CS = 16, 96, 16, 160
    a.e("s_lshl_b32 s62, s61, 2")
    a.e("s_and_b32 s31, s24, 3")
    a.e("s_add_u32 s62, s62, s31")
    a.e("s_mul_i32 s55, s62, 40960")
    a.e(f"s_add_u32 s55, s55, {WS_X1}")
    a.e(f"s_mul_i32 s56, s62, {32*80}")
    a.e(f"s_add_u32 s56, s56, {WS_ST1}")
    a.e("s_mul_i32 s57, s60, 640")
    a.e(f"s_add_u32 s57, s57, {WS_CS3}")
    a.e("s_lshr_b32 s58, s62, 1")
    a.e("s_mul_i32 s58, s58, 54")
    a.e("s_mul_i32 s31, s60, 5")
    a.e("s_add_u32 s58, s58, s31")
    a.e("s_lshl_b32 s58, s58, 12")
    a.e("s_and_b32 s31, s62, 1")
    a.e("s_lshl_b32 s31, s31, 11")
    a.e("s_add_u32 s58, s58, s31")
    a.e(f"s_add_u32 s58, s58, {WS_H3}")
    a.e("v_and_b32 v3, 31, v2")
    a.e("v_mul_u32_u24 v3, 80, v3")
    a.e("v_lshrrev_b32 v4, 5, v2")
    a.e("v_lshlrev_b32 v4, 4, v4")
    a.e(f"v_add_u32 v{VB}, 0x18000, v{VG}")
    a.wait_vm("FL")
    spin_wait(a, "LatB_w", 5, 6, 16, "s59", 5, cnt="s62")
    def ldx6(s):
        r = XR + 4 * (s % NX)
        if s % 8 == 0 and s: a.e("s_add_u32 s55, s55, 8192")
        a.vmem(f"buffer_load_dwordx4 v[{r}:{r+3}], v{VG if s % 8 < 4 else VG2}, s[8:11], s55 offen offset:{(s%4)*1024} sc1", ("X6", s))
    for s in range(4): ldx6(s)
    for i in range(5):
        a.vmem(f"buffer_load_dwordx4 v[{CS+4*i}:{CS+4*i+3}], v3, s[8:11], s56 offen offset:{i*16} sc1", "S6")
    for s in range(4, NX): ldx6(s)
    endper()
    a.e("s_bitcmp1_b32 s27, 1")
    a.e("s_cbranch_scc1 LatB_odd")
    sv2 = list(a.vm)
    kvblock()
    endper()
    a.label("LatB_odd")
    a.vm = [t for t in sv2 if t != ("KV", "next")]
    first = True
    stamp(a, 10)
    NM6, D6 = 200, 6
    def csreg(k): return (XR + 32 + 4 * k) if k < 8 else (CS + 4 * (k - 8))
    def ldcs(k):
        r = csreg(k)
        a.vmem(f"buffer_load_dwordx4 v[{r}:{r+3}], v4, s[8:11], s57 offen offset:{k*32}", ("CS", k // 4))
    def rd6(n):
        g, o = n // 20, n % 20
        f = FR + 4 * (n % NF)
        a.ds(f"ds_read_b128 v[{f}:{f+3}], v{VB} offset:{(g%3)*20480 + o*1024}", ("F", n))
    stat = []
    for i in range(1, 10):
        stat += [f"v_add_f32 v{CS}, v{CS}, v{CS+2*i}", f"v_add_f32 v{CS+1}, v{CS+1}, v{CS+2*i+1}"]
    stat += [f"v_mul_f32 v240, {fx(1/640)}, v{CS}", f"v_mul_f32 v241, {fx(1/640)}, v{CS+1}", "v_fma_f32 v241, -v240, v240, v241",
             "v_max_f32 v241, 0, v241", f"v_add_f32 v241, {fx(1e-5)}, v241", "v_rsq_f32 v244, v241", "v_nop",
             "v_mul_f32 v241, v241, v244", f"v_mul_f32 v242, {fx(GC1)}, v244", "v_mul_f32 v243, v244, v244",
             "v_mul_f32 v243, v243, v244", f"v_mul_f32 v243, {fx(GC2)}, v243"]
    kvblock()
    for n in range(D6): rd6(n)
    for n in range(NM6):
        ks, jb = n // 5, n % 5
        m = n + D6
        if m < NM6:
            if m % 20 == 0:
                g = m // 20
                if first:
                    a.vm = [("KV", "next") if k < len(a.vm) - 1 and a.vm[k + 1] == ("KV", "new") and t != ("KV", "new") else t for k, t in enumerate(a.vm)]
                    first = False
                endper([("W3", g)])
                kvblock()
            rd6(m)
        g, o = (m - 6) // 20, (m - 6) % 20
        if 1 <= g < 8 and o < 5: w3dma(g + 2, o, ("W3", g + 2))
        if n == 24: a.wait_vm("S6")
        if 24 <= n < 24 + 15:
            for o_ in stat[2 * (n - 24):2 * (n - 24) + 2]: a.e(o_)
        if 48 <= n < 60: ldcs(8 + n - 48)
        if jb == 0: a.wait_vm(("X6", ks))
        a.wait_lg(("F", n))
        d = ACC + 16 * jb
        mf(a, d, FR + 4 * (n % NF), XR + 4 * (ks % NX), "0" if ks == 0 else rng16(d))
        if jb == 4:
            if ks + NX < 40: ldx6(ks + NX)
            elif ks < 32: ldcs(ks - 24)
    stamp(a, 11)
    for q in range(10):
        jb, rh = [2, 3, 0, 1, 4][q // 2], q % 2
        endper()
        kvblock()
        if q == 8:
            a.e("s_cmp_eq_u32 s60, 10")
            a.e("s_cbranch_scc1 LatB_ldt8")
        a.wait_vm(("CS", jb))
        d = ACC + 16 * jb + 8 * rh
        c = csreg(4 * jb) + 8 * rh
        def g6(x, t, c_):
            return [f"v_fma_f32 v{x}, -v240, v{c_}, v{x}", f"v_mul_f32 v{t}, v{x}, v{x}", f"v_fma_f32 v{t}, v{t}, v243, v242",
                    f"v_mul_f32 v{t}, v{t}, v{x}", f"v_exp_f32 v{t}, v{t}", f"v_fma_f32 v{t}, v{t}, v241, v241",
                    f"v_rcp_f32 v{t}, v{t}", f"v_mul_f32 v{x}, v{x}, v{t}"]
        for l in interleave([g6(d + i, FR + i, c + i) for i in range(8)]): a.e(l)
        for i in range(4): a.e(f"v_cvt_pk_bf16_f32 v{d+i}, v{d+2*i}, v{d+2*i+1}")
        a.e(f"s_add_u32 s31, s58, {jb*4096}")
        a.vmem(f"buffer_store_dwordx4 v[{d}:{d+3}], v1, s[8:11], s31 offen offset:{rh*512}", "ST")
    a.label("LatB_ldt8")
    stamp(a, 12)
    a.e("s_waitcnt vmcnt(8)")
    a.label("LatB_ldt")
    a.hist = []
    slot_pre()
    a.e("s_waitcnt vmcnt(16)")
    a.e("s_barrier")
    a.label("LatB_ld")
    a.e("s_cmp_le_i32 s52, 0")
    a.e("s_cbranch_scc1 LatB_fin")
    a.e("s_sub_u32 s52, s52, 1")
    for i in range(8): kvdma(i)
    slot_pre()
    a.e("s_waitcnt vmcnt(8)")
    a.e("s_barrier")
    a.e("s_branch LatB_ld")
    a.label("LatB_fin")
    a.e("s_waitcnt vmcnt(0)")
    stamp_store(a, 5)
    a.e("s_endpgm")
```
